```python
import torch

def _softmax(x, axis=-1):
    return torch.softmax(x, dim=axis)
def _gelu(x):
    return torch.nn.functional.gelu(x, approximate="tanh")
def _silu(x):
    return torch.nn.functional.silu(x)
def _sigmoid(x):
    return torch.sigmoid(x)
def _layernorm(x, axis=-1, eps=1e-5):
    m = x.mean(dim=axis, keepdim=True)
    v = x.var(dim=axis, keepdim=True, unbiased=False)
    return (x - m) / torch.sqrt(v + eps)
def _scatter_add(tgt, idx, src, axis=0):
    return tgt.clone().index_add_(axis, idx, src)
def _segment_sum(src, seg, n):
    out = torch.zeros((n,) + src.shape[1:], dtype=src.dtype)
    return out.index_add_(0, seg, src)
def _pad(x, pw):
    flat = tuple(v for pair in reversed(pw) for v in pair)
    return torch.nn.functional.pad(x, flat)

kernel_name = 'standalone__mha_block_cached__near_ridge'

def setup_inputs():

    _w = (lambda a: (lambda t: t.to(torch.bfloat16) if t.is_floating_point() else t)(torch.as_tensor(a)))
    B, Sq, D = 8, 160, 512
    H, Sk, Dh = 32, 512, 128
    return {
        "x": _w((lambda *s: torch.randn(*s, dtype=torch.bfloat16) * 0.8)(B, Sq, D)),
        "k_cache": _w((lambda *s: torch.randn(*s, dtype=torch.bfloat16) * 0.8)(B, H, Sk, Dh)),
        "v_cache": _w((lambda *s: torch.randn(*s, dtype=torch.bfloat16) * 0.05)(B, H, Sk, Dh)),
        "wq": _w((lambda *s: torch.randn(*s, dtype=torch.bfloat16) * 0.8)(D, H * Dh) * (D ** -0.5)),
        "wo": _w((lambda *s: torch.randn(*s, dtype=torch.bfloat16) * 0.05)(H * Dh, D) * ((H * Dh) ** -0.5)),
    }

def reference(x, k_cache, v_cache, wq, wo):
    B, Sq, D = x.shape
    H, Dh = 32, 128
    q = (lambda x, *d: x.permute(*d))((x @ wq).reshape(B, Sq, H, Dh), 0, 2, 1, 3)
    scores = torch.einsum("bhqd,bhkd->bhqk", q, k_cache) * (Dh ** -0.5)
    p = _softmax(scores, axis=-1)
    o = torch.einsum("bhqk,bhkd->bhqd", p, v_cache)
    return (lambda x, *d: x.permute(*d))(o, 0, 2, 1, 3).reshape(B, Sq, H * Dh) @ wo
```

```python
import re

TRANS = ("v_exp_f32", "v_log_f32", "v_rcp_f32", "v_rsq_f32", "v_sqrt_f32", "v_sin_f32", "v_cos_f32")


def regs_of(op):
    op = op.strip()
    op = op.lstrip("-")
    if op.startswith("abs("):
        op = op[4:-1]
    m = re.fullmatch(r"([vas])\[(\d+):(\d+)\]", op)
    if m:
        return {(m.group(1), n) for n in range(int(m.group(2)), int(m.group(3)) + 1)}
    m = re.fullmatch(r"([vas])(\d+)", op)
    if m:
        return {(m.group(1), int(m.group(2)))}
    if op in ("vcc", "vcc_lo", "vcc_hi"):
        return {("s", "vcc")}
    if op == "m0":
        return {("s", "m0")}
    if op in ("exec",):
        return {("s", "exec")}
    return set()


class Ins:
    def __init__(self, text):
        self.text = text
        t = text.split(";")[0].strip()
        self.is_label = t.endswith(":")
        self.is_dir = t.startswith(".")
        self.real = bool(t) and not self.is_label and not self.is_dir
        self.mn = t.split()[0] if self.real else ""
        rest = t[len(self.mn):].strip() if self.real else ""
        ops = [o.strip() for o in re.split(r",(?![^\[]*\])", rest)] if rest else []
        if ops:
            parts = ops[-1].split()
            self.mods = parts[1:]
            ops[-1] = parts[0] if parts else ""
        else:
            self.mods = []
        self.ops = ops
        mn = self.mn
        self.mfma = mn.startswith("v_mfma")
        self.valu = mn.startswith("v_") and not self.mfma
        self.ds = mn.startswith("ds_")
        self.vmem = mn.startswith("buffer_") or mn.startswith("global_")
        self.salu = mn.startswith("s_")
        self.trans = mn.replace("_e32", "") in TRANS
        self.wr = set()
        self.rd = set()
        R = [regs_of(o) for o in ops]
        self.srcC = set()
        self.srcAB = set()
        if self.mfma:
            self.wr = R[0]
            self.srcAB = R[1] | R[2]
            self.srcC = R[3]
            self.rd = self.srcAB | self.srcC
        elif self.valu:
            if mn.startswith("v_permlane"):
                self.wr = R[0] | R[1]
                self.rd = R[0] | R[1]
            elif mn.startswith("v_cmp"):
                self.wr = R[0]
                for r in R[1:]:
                    self.rd |= r
            else:
                self.wr = R[0]
                for r in R[1:]:
                    self.rd |= r
                if mn.startswith("v_fmac") or mn.startswith("v_dot2c"):
                    self.rd |= R[0]
        elif self.ds:
            if mn.startswith("ds_read"):
                self.wr = R[0]
                self.rd = R[1]
            else:
                for r in R:
                    self.rd |= r
        elif self.vmem:
            lds = "lds" in self.mods
            if mn in ("buffer_wbl2", "buffer_inv"):
                pass
            elif "load" in mn and not lds:
                self.wr = R[0]
                for r in R[1:]:
                    self.rd |= r
            else:
                for r in R:
                    self.rd |= r
                if lds:
                    self.rd |= {("s", "m0")}
            self.lds = lds
        elif self.salu:
            if mn in ("s_waitcnt", "s_barrier", "s_nop", "s_endpgm", "s_sleep", "s_setprio") or mn.startswith("s_cbranch") or mn == "s_branch":
                pass
            elif mn.startswith("s_cmp"):
                for r in R:
                    self.rd |= r
            else:
                self.wr = R[0] if R else set()
                for r in R[1:]:
                    self.rd |= r

    def states(self):
        if not self.real:
            return 0
        if self.mn == "s_nop":
            return int(self.ops[0], 0) + 1
        return 1


class KB:
    def __init__(self):
        self.ins = []
        self.dsq = []
        self.vmq = []

    def __call__(self, text, tag=None):
        for line in text.split("\n"):
            self._emit(line, tag)

    def _emit(self, line, tag):
        i = Ins(line)
        self._pad(i)
        self.ins.append(i)
        if i.ds:
            self.dsq.append(tag)
        elif i.vmem:
            self.vmq.append(tag)
        elif i.mn == "s_waitcnt":
            m = re.search(r"lgkmcnt\((\d+)\)", line)
            if m:
                n = int(m.group(1))
                self.dsq = self.dsq[len(self.dsq) - n:] if n < len(self.dsq) and n > 0 else ([] if n == 0 else self.dsq)
            m = re.search(r"vmcnt\((\d+)\)", line)
            if m:
                n = int(m.group(1))
                self.vmq = self.vmq[len(self.vmq) - n:] if n < len(self.vmq) and n > 0 else ([] if n == 0 else self.vmq)

    def label(self, n):
        self.ins.append(Ins(n + ":"))

    def _need(self, q, tags, cap):
        last = -1
        for k, t in enumerate(q):
            if t in tags:
                last = k
        if last < 0:
            return None
        return min(len(q) - 1 - last, cap)

    def wait(self, ds=(), vm=(), force_ds0=False):
        if isinstance(ds, str):
            ds = (ds,)
        if isinstance(vm, str):
            vm = (vm,)
        nd = self._need(self.dsq, set(ds), 14)
        if force_ds0 and self.dsq:
            nd = 0
        nv = self._need(self.vmq, set(vm), 62)
        parts = []
        if nv is not None:
            parts.append("vmcnt(%d)" % nv)
        if nd is not None:
            parts.append("lgkmcnt(%d)" % nd)
        if parts:
            self("s_waitcnt " + " ".join(parts))

    def _pad(self, c):
        if not c.real:
            return
        need = 0
        dist = 0
        for p in reversed(self.ins):
            if dist >= 20:
                break
            if not p.real:
                continue
            req = self._req(p, c)
            if req > dist:
                need = max(need, req - dist)
            dist += p.states()
        if need > 0:
            n = Ins("s_nop %d" % (need - 1))
            self.ins.append(n)
            self.npad = getattr(self, "npad", 0) + 1

    @staticmethod
    def _req(p, c):
        vr = lambda s: {x for x in s if x[0] in "va"}
        sr = lambda s: {x for x in s if x[0] == "s"}
        req = 0
        if p.mfma:
            passes = 4 if "16x16x32" in p.mn else 8
            big = {4: 8, 8: 12}[passes]
            if c.mfma:
                if p.wr & c.srcAB:
                    req = max(req, big)
                if p.wr & c.srcC and p.wr != c.srcC:
                    req = max(req, big - 2)
                if p.wr & c.wr and not (p.wr == c.srcC):
                    req = max(req, big)
            elif c.valu or c.ds or c.vmem:
                if p.wr & (c.rd | c.wr):
                    req = max(req, big)
                if c.valu and (p.srcC & c.wr):
                    req = max(req, {4: 3, 8: 7}[passes])
        if p.valu:
            if c.mfma and (vr(p.wr) & c.rd):
                req = max(req, 2)
            if p.trans and c.valu and not c.trans and (p.wr & c.rd):
                req = max(req, 1)
            if p.trans and (c.ds or c.vmem) and (p.wr & c.rd):
                req = max(req, 1)
            if c.mn.startswith("v_permlane") and (vr(p.wr) & c.rd):
                req = max(req, 2)
            if c.mn.startswith("v_readfirstlane") or c.mn.startswith("v_readlane"):
                if vr(p.wr) & c.rd:
                    req = max(req, 1)
            if sr(p.wr):
                if c.vmem and (sr(p.wr) & c.rd):
                    req = max(req, 5)
                if c.valu and (sr(p.wr) & c.rd):
                    req = max(req, 2)
                if c.salu and (sr(p.wr) & c.rd):
                    req = max(req, 1)
                if c.mn.startswith("s_cbranch_vcc") and ("s", "vcc") in p.wr:
                    req = max(req, 1)
        if p.salu and ("s", "m0") in p.wr and c.vmem and getattr(c, "lds", False):
            req = max(req, 1)
        if p.vmem and "store" in p.mn and ("x4" in p.mn or "x3" in p.mn):
            data = regs_of(p.ops[0])
            if (c.valu or c.mfma or c.ds or c.vmem) and (data & c.wr):
                req = max(req, 2)
        return req

    def text(self):
        out = []
        for i in self.ins:
            if i.is_label or i.is_dir:
                out.append(i.text)
            else:
                out.append("    " + i.text)
        return "\n".join(out) + "\n"


def interleave(k, mfmas, fillers, per_gap=None):
    for n, m in enumerate(mfmas):
        if callable(m):
            m()
        else:
            k(m)
        if n < len(fillers):
            for f in fillers[n]:
                emit(k, f)
    for n in range(len(mfmas), len(fillers)):
        for f in fillers[n]:
            emit(k, f)


def emit(k, f):
    if callable(f):
        f()
    elif isinstance(f, tuple):
        k(f[0], f[1])
    else:
        k(f)


def spread(items, ngaps, per=2, start=0):
    g = [[] for _ in range(ngaps)]
    n = start
    for it in items:
        while n < ngaps - 1 and len(g[n]) >= per:
            n += 1
        g[n].append(it)
    return g
```

```python
NAME = "standalone__mha_block_cached__near_ridge"
HDR = """; Kernarg layout for this problem (64 bytes, ptrs only, base s[0:1]):
"""
STAMP_OFF = 200 * 1024 * 1024

class Asm:
    def __init__(self):
        self.lines = []
    def __call__(self, s=""):
        for l in s.split("\n"):
            self.lines.append(l)
    def label(self, n):
        self.lines.append(n + ":")
    def text(self):
        return "\n".join(("    " + l if l and not l.endswith(":") and not l.startswith(".") else l) for l in self.lines) + "\n"

def kernel_begin(a, name):
    a(".text")
    a(".globl %s" % name)
    a(".p2align 8")
    a(".type %s,@function" % name)
    a.label(name)

def kernel_desc(name, vgpr, sgpr, accum):
    return """.section .rodata,"a"
.p2align 6
.amdhsa_kernel %s
  .amdhsa_next_free_vgpr %d
  .amdhsa_next_free_sgpr %d
  .amdhsa_accum_offset %d
  .amdhsa_group_segment_fixed_size 0
  .amdhsa_kernarg_size 64
  .amdhsa_user_sgpr_count 2
  .amdhsa_user_sgpr_kernarg_segment_ptr 1
  .amdhsa_system_sgpr_workgroup_id_x 1
.end_amdhsa_kernel
""" % (name, vgpr, sgpr, accum)

def srd(a, d, base, nbytes):
    a("s_mov_b32 s%d, s%d" % (d, base))
    a("s_and_b32 s%d, s%d, 0xffff" % (d + 1, base + 1))
    a("s_mov_b32 s%d, 0x%x" % (d + 2, nbytes))
    a("s_mov_b32 s%d, 0x20000" % (d + 3))
```

```python
import sys
from lib import NAME, HDR, STAMP_OFF, kernel_desc
from kb import KB, interleave, spread, emit

OPT = dict(stamps=0, dumpq=0, force_slow=0, fallback=1)
for a in sys.argv[2:]:
    kk, vv = a.split("=")
    OPT[kk] = int(vv)

KN = NAME + "_kernel"
k = KB()

KS = [0, 16384, 32768]
VBASE = 49152
VS = [49152, 65536, 81920, 98304]
PBASE = 114688
MISC = 155648
STG = 81920
STG_SZ = 36864
OX_OFF = 0
PX_OFF = 16 << 20
FL_OFF = 32 << 20
DUMP_OFF = 48 << 20
OOB = 0x40000000
SPIN = 400000

vL, vKd, vVd, vOd, vPw, vPr = 1, 2, 3, 4, 5, 6
vKr = [7, 8, 9, 10]
vVo = [11, 12, 13, 14]
vVp = [15, 16, 17, 18]
vWor = [19, 20]
vLin = 21
vT0, vT1 = 22, 23
S0, POWN, PPAR, O0, NEGM, L0, VFP, ONES, TMP = 24, 64, 84, 104, 184, 204, 224, 240, 244
aQ, aWO, aKF, aVFO = 0, 80, 208, 240
vXd = [104, 105, 106, 107, 108]
vWd = [109, 110, 111, 112]
vXr = [113, 114]
vWr = [115, 116]
QACC = 24
aXF = 80
aWF = 208

sW = 3
X, K_, V_, WQ, WO, OUT, DBG, WS = 20, 24, 28, 32, 36, 40, 44, 48
sI, sB, sC, sX, sQH, sSS, sT0, sT1, sT2, sWT, sWX, sWW = 52, 53, 54, 55, 56, 57, 58, 59, 60, 61, 62, 63
sPASS, sCNT, sFL, sSC0, sSC1, sXCC = 64, 65, 66, 68, 69, 67
STAMP0 = 70
NST = 16


def vr(b, n=4):
    return "v[%d:%d]" % (b, b + n - 1)


def ar(b, n=4):
    return "a[%d:%d]" % (b, b + n - 1)


def sr(b, n=4):
    return "s[%d:%d]" % (b, b + n - 1)


def stamp(i):
    if OPT["stamps"]:
        k("s_memrealtime s[%d:%d]" % (STAMP0 + 2 * i, STAMP0 + 2 * i + 1))


def mfma(d, a, b, c):
    return "v_mfma_f32_16x16x32_bf16 %s, %s, %s, %s" % (d, a, b, c)


def srd(d, base, off_sreg, total):
    if off_sreg is None:
        k("s_mov_b32 s%d, s%d" % (d, base))
        k("s_and_b32 s%d, s%d, 0xffff" % (d + 1, base + 1))
        k("s_mov_b32 s%d, 0x%x" % (d + 2, total))
    else:
        k("s_add_u32 s%d, s%d, s%d" % (d, base, off_sreg))
        k("s_addc_u32 s%d, s%d, 0" % (d + 1, base + 1))
        k("s_and_b32 s%d, s%d, 0xffff" % (d + 1, d + 1))
        k("s_sub_u32 s%d, 0x%x, s%d" % (d + 2, total, off_sreg))
    k("s_mov_b32 s%d, 0x20000" % (d + 3))


def S(kt, t): return S0 + (kt * 5 + t) * 4
def On(dt, t): return O0 + (dt * 5 + t) * 4
def Qf(kq, t): return aQ + (kq * 5 + t) * 4
def Kf(kt, kq): return aKF + (kt * 4 + kq) * 4
def WoF(ksg, e): return aWO + (ksg * 2 + e) * 4


def dma_kv(which, j, slot):
    s, vd = (K_, vKd) if which == "K" else (V_, vVd)
    tag = "%s%d" % (which, j)
    r = ["s_add_u32 m0, s%d, %d" % (sWT, slot), "s_mov_b32 s%d, %d" % (sT0, j * 16384)]
    for n in range(4):
        r.append(("buffer_load_dwordx4 v%d, %s, s%d offen offset:%d nt lds" % (vd, sr(s), sT0, n * 1024), tag))
    return r


def dma_wo(u, slot):
    tag = "W%d" % u
    r = ["s_add_u32 m0, s%d, %d" % (sWT, slot),
         "s_xor_b32 s%d, s%d, %d" % (sT1, sC, u >> 1),
         "s_lshl_b32 s%d, s%d, 17" % (sT1, sT1)]
    for n in range(4):
        r.append("s_add_u32 s%d, s%d, %d" % (sT2, sT1, (u & 1) * 65536 + 3072 * n))
        r.append(("buffer_load_dwordx4 v%d, %s, s%d offen offset:%d lds" % (vOd, sr(WO), sT2, n * 1024), tag))
    return r


def dma_stage(s):
    tag = "S%d" % s
    buf = (s & 1) * STG_SZ
    r = ["s_lshl_b32 s%d, s%d, 7" % (sT0, sSS),
         "s_add_u32 m0, s%d, %d" % (sWX, buf),
         "s_lshl_b32 s%d, s%d, 19" % (sT1, sSS)]
    for n in range(4):
        r.append(("buffer_load_dwordx4 v%d, %s, s%d offen offset:%d lds" % (vXd[n], sr(X), sT0, n * 1024), tag))
    r.append("s_add_u32 m0, s%d, %d" % (sWX, buf + 4096))
    r.append("s_add_u32 s%d, s%d, 1" % (sSS, sSS))
    r.append(("buffer_load_dwordx4 v%d, %s, s%d offen lds" % (vXd[4], sr(X), sT0), tag))
    r.append("s_add_u32 m0, s%d, %d" % (sWW, buf))
    r.append("s_and_b32 s%d, s%d, 7" % (sSS, sSS))
    for n in range(4):
        r.append(("buffer_load_dwordx4 v%d, %s, s%d offen offset:%d lds" % (vWd[n], sr(WQ), sT1, n * 1024), tag))
    return r


def run(lst):
    for f in lst:
        emit(k, f)


def rd_k(kt, kq, slot, tag):
    return ("ds_read_b128 %s, v%d offset:%d" % (ar(Kf(kt, kq)), vKr[kq], slot + kt * 1024), tag)


def rd_v(own, dt, e2, slot, tag):
    off = slot - VBASE + e2 * 1024
    if own:
        return ("ds_read_b64_tr_b16 %s, v%d offset:%d" % (ar(aVFO + dt * 4 + e2 * 2, 2), vVo[dt], off), tag)
    return ("ds_read_b64_tr_b16 %s, v%d offset:%d" % (vr(VFP + dt * 4 + e2 * 2, 2), vVp[dt], off), tag)


def rd_ppar(t, buf, tag):
    return ("ds_read_b128 %s, v%d offset:%d" % (vr(PPAR + 4 * t), vPr, buf * 5120 + t * 1024), tag)


def wr_pown(t, buf, tag):
    return ("ds_write_b128 v%d, %s offset:%d" % (vPw, vr(POWN + 4 * t), buf * 5120 + t * 1024), tag)


def rd_wo(u, slot, tag):
    r = []
    va, off = (vWor[0], slot) if slot < VBASE else (vWor[1], slot - VBASE)
    for pp in range(2):
        for e in range(2):
            for e2 in range(2):
                r.append(("ds_read_b64_tr_b16 %s, v%d offset:%d" % (
                    ar(WoF(2 * u + pp, e) + 2 * e2, 2), va, off + (32 * pp + 16 * e2) * 256 + 8 * e), tag))
    return r


def exp_(kt, t, r_):
    s = S(kt, t) + r_
    return "v_exp_f32 v%d, v%d" % (s, s)


def cvt_p(t, n):
    s = S(n >> 1, t) + (n & 1) * 2
    return "v_cvt_pk_bf16_f32 v%d, v%d, v%d" % (POWN + 4 * t + n, s, s + 1)


k(".text")
k(".globl %s" % KN)
k(".p2align 8")
k(".type %s,@function" % KN)
k.label(KN)
k("s_cmp_ge_u32 s2, 256")
k("s_cbranch_scc1 L_end")
stamp(0)
k("s_load_dwordx8 s[4:11], s[0:1], 0")
k("s_load_dwordx8 s[12:19], s[0:1], 32")
k("v_lshrrev_b32 v%d, 6, v0" % vT0)
k("v_and_b32 v%d, 63, v0" % vL)
k("v_readfirstlane_b32 s%d, v%d" % (sW, vT0))
k("s_and_b32 s%d, s2, 7" % sI)
k("s_lshr_b32 s%d, s2, 5" % sB)
k("s_bfe_u32 s%d, s2, 0x20003" % sC)
k("s_getreg_b32 s%d, hwreg(HW_REG_XCC_ID, 0, 4)" % sXCC)
k("s_and_b32 s%d, s%d, 1" % (sX, sW))
k("s_lshr_b32 s%d, s%d, 1" % (sQH, sW))
k("s_lshl_b32 s%d, s%d, 1" % (sSS, sC))
k("s_add_u32 s%d, s%d, s%d" % (sSS, sSS, sB))
k("s_and_b32 s%d, s%d, 7" % (sSS, sSS))
k("s_lshl_b32 s%d, s%d, 12" % (sWT, sW))
k("s_mul_i32 s%d, s%d, 5120" % (sWX, sW))
k("s_add_u32 s%d, s%d, %d" % (sWX, sWX, STG))
k("s_add_u32 s%d, s%d, %d" % (sWW, sWT, STG + 20480))
k("s_mov_b32 s%d, 0" % sPASS)
g_, i16, r_, cc = TMP, TMP + 1, TMP + 2, TMP + 3
t0, t1, t2 = TMP + 4, TMP + 5, TMP + 6
k("v_lshrrev_b32 v%d, 4, v%d" % (g_, vL))
k("v_and_b32 v%d, 15, v%d" % (i16, vL))
k("v_bfe_u32 v%d, v%d, 2, 2" % (r_, vL))
k("v_and_b32 v%d, 3, v%d" % (cc, vL))
k("v_lshlrev_b32 v%d, 4, v%d" % (vLin, vL))
k("v_and_b32 v%d, 7, v%d" % (t0, vL))
k("v_xor_b32 v%d, v%d, v%d" % (t0, t0, g_))
k("s_lshl_b32 s%d, s%d, 2" % (sT0, sX))
k("v_xor_b32 v%d, s%d, v%d" % (t0, sT0, t0))
k("v_lshlrev_b32 v%d, 4, v%d" % (t0, t0))
k("v_lshrrev_b32 v%d, 3, v%d" % (t1, vL))
k("v_lshl_add_u32 v%d, v%d, 10, v%d" % (vXd[0], t1, t0))
k("v_xor_b32 v%d, 64, v%d" % (t0, vXd[0]))
k("v_add_u32 v%d, %d, v%d" % (vXd[1], 7168, t0))
k("v_add_u32 v%d, %d, v%d" % (vXd[2], 2 * 7168, vXd[0]))
k("v_add_u32 v%d, %d, v%d" % (vXd[3], 3 * 7168, t0))
k("v_add_u32 v%d, %d, v%d" % (vXd[4], 4 * 8192, vXd[0]))
k("v_lshlrev_b32 v%d, 2, v%d" % (t0, g_))
k("v_xor_b32 v%d, v%d, v%d" % (t0, t0, i16))
k("v_lshlrev_b32 v%d, 4, v%d" % (t0, t0))
k("v_lshl_add_u32 v%d, v%d, 13, v%d" % (vWd[0], g_, t0))
k("v_lshl_add_u32 v%d, v%d, 10, v%d" % (vOd, g_, t0))
for n in range(1, 4):
    k("v_add_u32 v%d, %d, v%d" % (vWd[n], n * (32768 - 1024), vWd[0]))
k("s_lshl_b32 s%d, s%d, 2" % (sT0, sW))
k("v_xor_b32 v%d, v%d, v%d" % (t0, i16, g_))
k("v_xor_b32 v%d, s%d, v%d" % (t1, sT0, t0))
k("v_lshlrev_b32 v%d, 4, v%d" % (t1, t1))
k("v_lshl_add_u32 v%d, v%d, 8, v%d" % (vKd, g_, t1))
k("s_lshl_b32 s%d, s2, 8" % sFL)
k("s_add_u32 s%d, s%d, 0x%x" % (sFL, sFL, FL_OFF))
k("v_lshlrev_b32 v%d, 7, v%d" % (vT0, vL))
k("v_add_u32 v%d, s%d, v%d" % (vT0, sT0, vT0))
k("v_mov_b32 v%d, 0x%x" % (t1, OOB))
k("v_cmp_gt_u32 vcc, 2, v%d" % vL)
k("v_cndmask_b32 v%d, v%d, v%d, vcc" % (vT0, t1, vT0))
k("v_mov_b32 v%d, 0" % vT1)
k("s_waitcnt lgkmcnt(0)")
k("s_mul_i32 s%d, s%d, 163840" % (sT0, sB))
k("s_mul_i32 s%d, s%d, 40960" % (sT1, sW))
k("s_add_u32 s%d, s%d, s%d" % (sT0, sT0, sT1))
srd(X, 4, sT0, 8 * 160 * 512 * 2)
k("s_lshl_b32 s%d, s%d, 2" % (sT2, sI))
k("s_add_u32 s%d, s%d, s%d" % (sT2, sT2, sC))
k("s_lshl_b32 s%d, s%d, 8" % (sT0, sT2))
k("s_lshl_b32 s%d, s%d, 17" % (sT1, sW))
k("s_add_u32 s%d, s%d, s%d" % (sT0, sT0, sT1))
srd(WQ, 10, sT0, 512 * 4096 * 2)
srd(WS, 18, None, 268435456)
k("buffer_store_dword v%d, v%d, %s, s%d offen sc1" % (vT1, vT0, sr(WS), sFL), "Z")
run(dma_stage(0))
k("s_lshl_b32 s%d, s%d, 5" % (sT0, sB))
k("s_add_u32 s%d, s%d, s%d" % (sT0, sT0, sT2))
k("s_lshl_b32 s%d, s%d, 17" % (sT0, sT0))
k("s_add_u32 s%d, s%d, s%d" % (sT2, sT0, sWT))
srd(K_, 6, sT2, 8 * 32 * 512 * 128 * 2)
srd(V_, 8, sT2, 8 * 32 * 512 * 128 * 2)
run(dma_stage(1))
run(dma_kv("K", 0, KS[0]))
stamp(1)
k("s_lshl_b32 s%d, s%d, 19" % (sT0, sI))
k("s_lshl_b32 s%d, s%d, 8" % (sT1, sC))
k("s_add_u32 s%d, s%d, s%d" % (sT0, sT0, sT1))
k("s_lshl_b32 s%d, s%d, 14" % (sT1, sW))
k("s_add_u32 s%d, s%d, s%d" % (sT0, sT0, sT1))
srd(WO, 12, sT0, 4096 * 512 * 2)
srd(OUT, 14, None, 8 * 160 * 512 * 2)
srd(DBG, 16, None, 256)
k("s_lshl_b32 s%d, s%d, 3" % (sT0, sX))
k("v_lshlrev_b32 v%d, 1, v%d" % (t1, g_))
k("v_xor_b32 v%d, v%d, v%d" % (t1, t1, i16))
k("v_xor_b32 v%d, s%d, v%d" % (t1, sT0, t1))
k("v_lshlrev_b32 v%d, 4, v%d" % (t1, t1))
k("v_lshl_add_u32 v%d, v%d, 8, v%d" % (vVd, g_, t1))
k("v_lshrrev_b32 v%d, 1, v%d" % (t1, i16))
k("v_xor_b32 v%d, v%d, v%d" % (t1, t1, g_))
k("v_lshlrev_b32 v%d, 4, v%d" % (t1, t1))
k("v_lshl_add_u32 v%d, v%d, 7, v%d" % (t1, i16, t1))
k("s_mul_i32 s%d, s%d, 10240" % (sT0, sQH))
k("s_add_u32 s%d, s%d, %d" % (sT0, sT0, STG))
k("v_add_u32 v%d, s%d, v%d" % (vXr[0], sT0, t1))
k("v_xor_b32 v%d, 64, v%d" % (vXr[1], vXr[0]))
k("s_lshl_b32 s%d, s%d, 1" % (sT0, sX))
k("v_xor_b32 v%d, s%d, v%d" % (t1, sT0, r_))
k("v_lshl_add_u32 v%d, v%d, 2, v%d" % (t1, t1, cc))
k("v_lshlrev_b32 v%d, 4, v%d" % (t1, t1))
k("v_lshl_add_u32 v%d, v%d, 3, v%d" % (t2, g_, r_))
k("v_lshl_add_u32 v%d, v%d, 8, v%d" % (t1, t2, t1))
k("v_add_u32 v%d, %d, v%d" % (vWr[0], STG + 20480, t1))
k("v_xor_b32 v%d, 64, v%d" % (vWr[1], vWr[0]))
k("v_lshlrev_b32 v%d, 4, v%d" % (t1, t0))
k("s_lshl_b32 s%d, s%d, 7" % (sT0, sX))
k("v_xor_b32 v%d, s%d, v%d" % (t1, sT0, t1))
k("v_lshl_add_u32 v%d, v%d, 12, v%d" % (t1, r_, t1))
k("v_lshl_add_u32 v%d, v%d, 8, v%d" % (t1, cc, t1))
k("s_lshl_b32 s%d, s%d, 11" % (sT1, sX))
k("v_add_u32 v%d, s%d, v%d" % (vKr[0], sT1, t1))
for n in range(1, 4):
    k("v_xor_b32 v%d, %d, v%d" % (vKr[n], 64 * n, vKr[0]))
k("v_and_b32 v%d, 1, v%d" % (t1, g_))
k("v_lshlrev_b32 v%d, 3, v%d" % (t1, t1))
k("v_lshl_add_u32 v%d, v%d, 1, v%d" % (t1, r_, t1))
k("v_lshrrev_b32 v%d, 1, v%d" % (t2, cc))
k("v_xor_b32 v%d, v%d, v%d" % (t1, t1, t2))
k("s_lshl_b32 s%d, s%d, 3" % (sT0, sX))
k("v_xor_b32 v%d, s%d, v%d" % (t1, sT0, t1))
k("v_lshlrev_b32 v%d, 4, v%d" % (t1, t1))
k("v_and_b32 v%d, 1, v%d" % (t2, cc))
k("v_lshl_add_u32 v%d, v%d, 3, v%d" % (t1, t2, t1))
k("v_lshl_add_u32 v%d, v%d, 8, v%d" % (t1, r_, t1))
k("v_lshl_add_u32 v%d, v%d, 12, v%d" % (t1, g_, t1))
k("s_add_u32 s%d, s%d, %d" % (sT1, sT1, VBASE))
k("v_add_u32 v%d, s%d, v%d" % (vVo[0], sT1, t1))
for n in range(1, 4):
    k("v_xor_b32 v%d, %d, v%d" % (vVo[n], 32 * n, vVo[0]))
for n in range(4):
    k("v_xor_b32 v%d, 2048, v%d" % (vVp[n], vVo[n]))
k("v_xor_b32 v%d, s%d, v%d" % (t1, sW, r_))
k("v_lshl_add_u32 v%d, v%d, 2, v%d" % (t1, t1, cc))
k("v_lshlrev_b32 v%d, 4, v%d" % (t1, t1))
k("v_lshl_add_u32 v%d, v%d, 2, v%d" % (t2, g_, r_))
k("v_lshl_add_u32 v%d, v%d, 8, v%d" % (vWor[0], t2, t1))
k("v_add_u32 v%d, %d, v%d" % (vWor[1], VBASE, vWor[0]))
k("s_mul_i32 s%d, s%d, 10240" % (sT0, sW))
k("s_add_u32 s%d, s%d, %d" % (sT0, sT0, PBASE))
k("v_add_u32 v%d, s%d, v%d" % (vPr, sT0, vLin))
k("s_xor_b32 s%d, s%d, 1" % (sT0, sW))
k("s_mul_i32 s%d, s%d, 10240" % (sT0, sT0))
k("s_add_u32 s%d, s%d, %d" % (sT0, sT0, PBASE))
k("v_add_u32 v%d, s%d, v%d" % (vPw, sT0, vLin))
for n in range(4):
    k("v_mov_b32 v%d, 0x3f803f80" % (ONES + n))
k("s_or_b32 s%d, s%d, 0x80" % (sT0, sXCC))
k("s_lshl_b32 s%d, s%d, 3" % (sT1, sC))
k("s_lshl_b32 s%d, s%d, s%d" % (sT0, sT0, sT1))
k("v_mov_b32 v%d, s%d" % (vT1, sT0))
k("s_lshl_b32 s%d, s%d, 3" % (sT0, sB))
k("s_add_u32 s%d, s%d, s%d" % (sT0, sT0, sI))
k("s_lshl_b32 s%d, s%d, 2" % (sT0, sT0))
k("v_mov_b32 v%d, s%d" % (t1, sT0))
k("v_mov_b32 v%d, 0x%x" % (t2, OOB))
k("v_cmp_eq_u32 vcc, 0, v0")
k("v_cndmask_b32 v%d, v%d, v%d, vcc" % (vT0, t2, t1))
k("s_mov_b32 s%d, 0x%x" % (sSC0, 0x3e0293ee))
k("s_mov_b32 s%d, s%d" % (sSC1, sSC0))

after = {1: [("K", 1, KS[1])], 2: [("V", 0, VS[0])], 3: [("K", 2, KS[2])], 4: [("V", 1, VS[1])]}
for s in range(8):
    buf = (s & 1) * STG_SZ
    k.wait(vm="S%d" % s, force_ds0=True)
    k("s_barrier")
    if s == 0:
        stamp(2)
    dma = []
    if s == 0:
        dma.append(("buffer_atomic_or v%d, v%d, %s, 0 offen" % (vT1, vT0, sr(DBG)), "A"))
    if 1 <= s <= 6:
        dma += dma_stage(s + 1)
    for (wh, j, slot) in after.get(s, []):
        dma += dma_kv(wh, j, slot)
    if s == 7:
        dma += dma_wo(0, VS[3]) + dma_kv("V", 2, VS[2])
    reads = [[], []]
    for ks in range(2):
        for t in range(5):
            reads[ks].append(("ds_read_b128 %s, v%d offset:%d" % (ar(aXF + (ks * 5 + t) * 4), vXr[ks], buf + t * 2048),
                              "x%d" % ks))
        for p in range(2):
            for e in range(2):
                for e2 in range(2):
                    reads[ks].append(("ds_read_b64_tr_b16 %s, v%d offset:%d" % (
                        ar(aWF + (ks * 4 + p * 2 + e) * 4 + 2 * e2, 2), vWr[p], buf + ks * 8192 + e2 * 1024 + 8 * e),
                        "w%d_%d" % (ks, p * 2 + e)))
    run(reads[0])
    run(dma)
    for ks in range(2):
        ms = []
        for tl in range(4):
            for t in range(5):
                d = vr(QACC + (tl * 5 + t) * 4)
                c = "0" if (s == 0 and ks == 0) else d
                m = mfma(d, ar(aWF + (ks * 4 + tl) * 4), ar(aXF + (ks * 5 + t) * 4), c)
                if t == 0:
                    ms.append(lambda m=m, ks=ks, tl=tl: (k.wait(ds=("x%d" % ks, "w%d_%d" % (ks, tl))), k(m)))
                else:
                    ms.append(m)
        if ks == 0:
            interleave(k, ms, spread(reads[1], 20, per=1))
        elif s == 7:
            k.wait(force_ds0=True)
            k("s_barrier")
            interleave(k, ms, [])
        else:
            interleave(k, ms, [])
stamp(3)
QT = NEGM
for p in range(2):
    for t in range(5):
        f = QT + (p * 5 + t) * 4
        for e in range(2):
            d = QACC + ((p * 2 + e) * 5 + t) * 4
            k("v_pk_mul_f32 %s, %s, s[%d:%d]" % (vr(d, 2), vr(d, 2), sSC0, sSC1))
            k("v_pk_mul_f32 %s, %s, s[%d:%d]" % (vr(d + 2, 2), vr(d + 2, 2), sSC0, sSC1))
            k("v_cvt_pk_bf16_f32 v%d, v%d, v%d" % (f + 2 * e, d, d + 1))
            k("v_cvt_pk_bf16_f32 v%d, v%d, v%d" % (f + 2 * e + 1, d + 2, d + 3))
        k("ds_write_b128 v%d, %s offset:%d" % (vPr, vr(f), (p * 5 + t) * 1024), "qw")
for n in range(40):
    k("v_accvgpr_write_b32 a%d, v%d" % (aQ + n, QT + n))
k.wait(vm="K0", force_ds0=True)
k("s_barrier")
for p in range(2):
    for t in range(5):
        k("ds_read_b128 %s, v%d offset:%d" % (ar(Qf(2 + p, t)), vPw, (p * 5 + t) * 1024), "qr")
if OPT["dumpq"]:
    k.wait(ds="qr")
    k("s_mul_i32 s%d, s2, 81920" % sT0)
    k("s_mul_i32 s%d, s%d, 20480" % (sT1, sW))
    k("s_add_u32 s%d, s%d, s%d" % (sT0, sT0, sT1))
    k("s_add_u32 s%d, s%d, 0x%x" % (sT0, sT0, DUMP_OFF))
    for n in range(20):
        k("buffer_store_dwordx4 %s, v%d, %s, s%d offen" % (ar(aQ + 4 * n), vLin, sr(WS), sT0), "dump")
        k("s_add_u32 s%d, s%d, 1024" % (sT0, sT0))

k("s_lshl_b32 s%d, s%d, 11" % (sT0, sX))
for n in range(4):
    k("v_subrev_u32 v%d, s%d, v%d" % (TMP + n, sT0, vKr[n]))
for n in range(4):
    k("ds_read_b128 %s, v%d offset:%d" % (ar(aVFO + 4 * n), TMP + n, KS[0]), "mk")
for kt in range(2):
    for kq in range(4):
        emit(k, rd_k(kt, kq, KS[0], "k%d" % kt))
k.wait(ds="mk")
for half in range(2):
    for kk in range(2):
        kq = half * 2 + kk
        for t in range(5):
            d = vr(S(half, t))
            k(mfma(d, ar(aVFO + 4 * kq), ar(Qf(kq, t)), "0" if kk == 0 else d))


def max_to_negm(src):
    for t in range(5):
        k("v_mov_b32 v%d, v%d" % (TMP + 5 + t, src(t)))
    for t in range(5):
        k("v_permlane16_swap_b32 v%d, v%d" % (src(t), TMP + 5 + t))
    for t in range(5):
        k("v_max_f32 v%d, v%d, v%d" % (src(t), src(t), TMP + 5 + t))
    for t in range(5):
        k("v_mov_b32 v%d, v%d" % (TMP + 5 + t, src(t)))
    for t in range(5):
        k("v_permlane32_swap_b32 v%d, v%d" % (src(t), TMP + 5 + t))
    for t in range(5):
        k("v_max_f32 v%d, v%d, v%d" % (src(t), src(t), TMP + 5 + t))
    for t in range(5):
        for n in range(4):
            k("v_sub_f32 v%d, 0, v%d" % (NEGM + 4 * t + n, src(t)))


for t in range(5):
    for n in range(4):
        k("v_add_f32 v%d, v%d, v%d" % (S(0, t) + n, S(0, t) + n, S(1, t) + n))
for t in range(5):
    k("v_max3_f32 v%d, v%d, v%d, v%d" % (TMP + t, S(0, t), S(0, t) + 1, S(0, t) + 2))
    k("v_max_f32 v%d, v%d, v%d" % (TMP + t, TMP + t, S(0, t) + 3))
max_to_negm(lambda t: TMP + t)

k.label("L_attn")


def qk_mfmas(kt):
    ms = []
    for kq in range(4):
        for t in range(5):
            d = vr(S(kt, t))
            ms.append(mfma(d, ar(Kf(kt, kq)), ar(Qf(kq, t)), vr(NEGM + 4 * t) if kq == 0 else d))
    return ms


k.wait(ds=("k0", "k1"))
interleave(k, qk_mfmas(0), [])
interleave(k, qk_mfmas(1), [[]] + [[exp_(0, n // 4, n % 4)] for n in range(19)])
k(exp_(0, 4, 3))
for t in range(5):
    for r in range(4):
        k(exp_(1, t, r))
for t in range(5):
    for n in range(4):
        k(cvt_p(t, n))
    emit(k, wr_pown(t, 0, "pw"))
stamp(4)

ISSUE = {
    0: [("K", 3, KS[0])],
    1: [("W", 1, VS[3]), ("K", 4, KS[1]), ("V", 3, VS[0])],
    2: [("K", 5, KS[2]), ("V", 4, VS[1])],
    3: [("W", 2, VS[3]), ("K", 6, KS[0]), ("V", 5, VS[2])],
    4: [("K", 7, KS[1]), ("V", 6, VS[0])],
    5: [("W", 3, VS[3]), ("W", 4, KS[2]), ("V", 7, VS[1])],
    6: [("W", 5, KS[0]), ("W", 6, VS[2])],
    7: [("W", 7, KS[1])],
}
WREAD = {0: [(0, VS[3])], 2: [(1, VS[3])], 4: [(2, VS[3])], 7: [(3, VS[3]), (4, KS[2])]}
WLATE = [(5, KS[0]), (6, VS[2]), (7, KS[1])]


def pv(own, dt, t, first=False):
    d = vr(On(dt, t))
    a = ar(aVFO + 4 * dt) if own else vr(VFP + 4 * dt)
    b = vr((POWN if own else PPAR) + 4 * t)
    return mfma(d, a, b, "0" if first else d)


def lsum(t, first=False):
    d = vr(L0 + 4 * t)
    return mfma(d, vr(ONES), vr(POWN + 4 * t), "0" if first else d)


def issue_list(j):
    r = []
    for (wh, n, slot) in ISSUE[j]:
        r += dma_wo(n, slot) if wh == "W" else dma_kv(wh, n, slot)
    return r


for j in range(7):
    need = ["K%d" % (j + 1), "V%d" % j] + ["W%d" % u for (u, _) in WREAD.get(j, [])]
    k.wait(vm=need, force_ds0=True)
    k("s_barrier")
    if j in (0, 3, 6):
        stamp({0: 5, 3: 6, 6: 7}[j])
    kslot = KS[(j + 1) % 3]
    vslot = VS[j % 3]
    kreads = [rd_k(kt, kq, kslot, "k%d" % kt) for kt in range(2) for kq in range(4)]
    dma = issue_list(j)
    if j == 5:
        dma = ["v_lshlrev_b32 v%d, 2, v%d" % (vT0, vL),
               ("buffer_load_dword v%d, v%d, %s, 0 offen sc1" % (vT1, vT0, sr(DBG)), "REG")] + dma
    vo = [rd_v(True, dt, e2, vslot, "vo") for dt in range(4) for e2 in range(2)]
    vp = [rd_v(False, dt, e2, vslot, "vp") for dt in range(4) for e2 in range(2)]
    pr = [rd_ppar(t, j & 1, "pr") for t in range(5)]
    wr = []
    for (u, slot) in WREAD.get(j, []):
        wr += rd_wo(u, slot, "wo")
    if j > 0:
        segA = [pv(False, dt, t) for dt in (2, 3) for t in range(5)]
        run(kreads[:4])
        interleave(k, segA, spread(kreads[4:] + dma[:14], 10, per=2))
        rest = dma[14:]
    else:
        run(kreads)
        run(dma)
        rest = []
    k.wait(ds="k0")
    interleave(k, qk_mfmas(0), spread(rest + vo + vp + pr + wr, 20, per=2))
    k.wait(ds="k1")
    interleave(k, qk_mfmas(1), [[exp_(0, n // 4, n % 4)] for n in range(20)])
    k.wait(ds=("vo", "vp", "pr", "wo"))
    segD = []
    fill = []
    for t in range(5):
        segD += [pv(True, dt, t, first=(j == 0)) for dt in range(4)] + [lsum(t, first=(j == 0))]
        fill += [[exp_(1, t, r)] for r in range(4)]
        fill.append([cvt_p(t - 1, 0), cvt_p(t - 1, 1)] if t > 0 else [])
    interleave(k, segD, fill)
    nb = (j + 1) & 1
    segE = [pv(False, dt, t) for dt in (0, 1) for t in range(5)]
    fe = []
    for t in range(4):
        fe += [cvt_p(t, 2), cvt_p(t, 3), wr_pown(t, nb, "pw")]
    fe += [cvt_p(4, n) for n in range(4)] + [wr_pown(4, nb, "pw")]
    interleave(k, segE, spread(fe, 10, per=2))

for t in range(5):
    k(lsum(t))
k("s_mul_i32 s%d, s%d, 1280" % (sT0, sW))
k("s_add_u32 s%d, s%d, %d" % (sT0, sT0, MISC))
k("v_lshl_add_u32 v%d, v%d, 2, s%d" % (TMP, vL, sT0))
k("s_xor_b32 s%d, s%d, 1" % (sT1, sW))
k("s_mul_i32 s%d, s%d, 1280" % (sT1, sT1))
k("s_add_u32 s%d, s%d, %d" % (sT1, sT1, MISC))
k("v_lshl_add_u32 v%d, v%d, 2, s%d" % (TMP + 1, vL, sT1))
k("s_lshl_b32 s%d, s%d, 2" % (sT1, sW))
k("s_add_u32 s%d, s%d, %d" % (sT1, sT1, MISC + 5120))
k("v_add_u32 v%d, s%d, v%d" % (TMP + 2, sT1, vLin))
k("v_add_u32 v%d, %d, v%d" % (TMP + 3, MISC + 5120, vLin))
for t in range(5):
    k("ds_write_b32 v%d, v%d offset:%d" % (TMP, L0 + 4 * t, t * 256), "lw")
k("v_max3_f32 v%d, v%d, v%d, v%d" % (TMP + 4, L0, L0 + 4, L0 + 8))
k("v_max3_f32 v%d, v%d, v%d, v%d" % (TMP + 4, TMP + 4, L0 + 12, L0 + 16))
k("ds_write_b32 v%d, v%d" % (TMP + 2, TMP + 4), "lw")
k("s_mul_i32 s%d, s2, 40960" % sT0)
k("s_mul_i32 s%d, s%d, 10240" % (sT1, sW))
k("s_add_u32 s%d, s%d, s%d" % (sSS, sT0, sT1))

k.wait(vm=["V7", "W3", "W4", "REG"], force_ds0=True)
k("s_barrier")
stamp(8)
vslot = VS[7 % 3]
vo = [rd_v(True, dt, e2, vslot, "vo") for dt in range(4) for e2 in range(2)]
vp = [rd_v(False, dt, e2, vslot, "vp%d" % (dt >> 1)) for dt in range(4) for e2 in range(2)]
pr = [rd_ppar(t, 1, "pr") for t in range(5)]
lr = [("ds_read_b128 %s, v%d" % (vr(TMP + 4), TMP + 3), "lm")]
lr += [("ds_read_b32 v%d, v%d offset:%d" % (L0 + 4 * t + 1, TMP + 1, t * 256), "lr") for t in range(5)]
segA = [pv(False, dt, t) for dt in (2, 3) for t in range(5)]
run(vo)
run(vp[:4])
interleave(k, segA, spread(lr + issue_list(7), 10, per=2))
run(vp[4:])
run(pr)
k.wait(ds=("lm", "lr"))
k("v_max3_f32 v%d, v%d, v%d, v%d" % (TMP + 4, TMP + 4, TMP + 5, TMP + 6))
k("v_max_f32 v%d, v%d, v%d" % (TMP + 4, TMP + 4, TMP + 7))
k("v_mov_b32 v%d, 0x4e800000" % (TMP + 5))
k("v_cmp_gt_f32 vcc, v%d, v%d" % (TMP + 4, TMP + 5))
if OPT["fallback"]:
    k("s_cbranch_vccnz L_fallback")
k.label("L_nofb")
for t in range(5):
    k("v_add_f32 v%d, v%d, v%d" % (L0 + 4 * t, L0 + 4 * t, L0 + 4 * t + 1))
for t in range(5):
    k("v_rcp_f32 v%d, v%d" % (L0 + 4 * t, L0 + 4 * t))
k.label("L_reg")
k("v_and_b32 v%d, 0x80808080, v%d" % (TMP + 4, vT1))
k("v_mov_b32 v%d, 0x80808080" % (TMP + 5))
k("v_cmp_ne_u32 vcc, v%d, v%d" % (TMP + 4, TMP + 5))
k("s_cbranch_vccnz L_regslow")
k.label("L_regok")
k("s_lshl_b32 s%d, s%d, 3" % (sT0, sB))
k("s_add_u32 s%d, s%d, s%d" % (sT0, sT0, sI))
k("s_nop 3")
k("v_readlane_b32 s%d, v%d, s%d" % (sT1, vT1, sT0))
k("s_or_b32 s%d, s%d, 0x80" % (sT0, sXCC))
k("s_mul_i32 s%d, s%d, 0x01010101" % (sT0, sT0))
k("s_cmp_eq_u32 s%d, s%d" % (sT0, sT1))
k("s_cselect_b32 s%d, 1, 0" % sXCC)
if OPT["force_slow"]:
    k("s_mov_b32 s%d, 0" % sXCC)

OF = S0


def fin(t):
    r = []
    for pp in range(2):
        f = OF + (pp * 5 + t) * 4
        for e in range(2):
            d = On(2 * pp + e, t)
            r.append("v_pk_mul_f32 %s, %s, %s op_sel_hi:[1,0]" % (vr(d, 2), vr(d, 2), vr(L0 + 4 * t, 2)))
            r.append("v_pk_mul_f32 %s, %s, %s op_sel_hi:[1,0]" % (vr(d + 2, 2), vr(d + 2, 2), vr(L0 + 4 * t, 2)))
            r.append("v_cvt_pk_bf16_f32 v%d, v%d, v%d" % (f + 2 * e, d, d + 1))
            r.append("v_cvt_pk_bf16_f32 v%d, v%d, v%d" % (f + 2 * e + 1, d + 2, d + 3))
    return r


k.wait(ds=("vo", "vp0", "vp1", "pr"))
wr34 = rd_wo(3, VS[3], "wo") + rd_wo(4, KS[2], "wo")
for t in range(5):
    ms = [pv(True, dt, t) for dt in range(4)] + [pv(False, dt, t) for dt in range(4)]
    if t == 0:
        interleave(k, ms, spread(wr34, 8, per=2))
    else:
        f = fin(t - 1)
        interleave(k, ms, [[], []] + spread(f[:12], 6, per=2))
        run(f[12:])
run(fin(4))
stamp(9)
k("s_cmp_eq_u32 s%d, 1" % sXCC)
k("s_cbranch_scc0 L_ostore_slow")
save = list(k.vmq)
for n in range(10):
    k("s_add_u32 s%d, s%d, %d" % (sT0, sSS, OX_OFF + (n // 4) * 4096))
    k("buffer_store_dwordx4 %s, v%d, %s, s%d offen offset:%d" % (vr(OF + 4 * n), vLin, sr(WS), sT0, (n % 4) * 1024), "OS")
k("s_branch L_ostore_done")
k.label("L_ostore_slow")
k.vmq = save
for n in range(10):
    k("s_add_u32 s%d, s%d, %d" % (sT0, sSS, OX_OFF + (n // 4) * 4096))
    k("buffer_store_dwordx4 %s, v%d, %s, s%d offen offset:%d sc1" % (vr(OF + 4 * n), vLin, sr(WS), sT0, (n % 4) * 1024), "OS")
k.label("L_ostore_done")
for n in range(10):
    k("ds_write_b128 v%d, %s offset:%d" % (vPr, vr(OF + 4 * n), n * 1024), "ow")
vO = [vLin, vKr[0], vKr[1]]
k("v_add_u32 v%d, 0x10000, v%d" % (vO[1], vLin))
k("v_add_u32 v%d, 0x20000, v%d" % (vO[2], vLin))
k.wait(vm=["W5", "W6", "W7"], force_ds0=True)
k("s_barrier")

ACC = O0
def Acc(e, qt): return ACC + (e * 10 + qt) * 4


def rd_o(dst, addr, tag):
    return ("ds_read_b128 %s, v%d offset:%d" % (ar(dst), vO[addr >> 16], addr & 0xffff), tag)


def chunk_addr(u, qh, p, t):
    f = p * 5 + t
    if u == 0:
        return PBASE + (qh * 20 + f) * 1024
    ci = qh * 3 + (u - 1)
    lin = ci * 20 + f
    return lin * 1024 if lin < 112 else MISC + (lin - 112) * 1024


def chunk_mfmas(u, qh, first, extra, tagbase):
    rds = [rd_o(aQ + (p * 5 + t) * 4, chunk_addr(u, qh, p, t), "%s_%d" % (tagbase, p)) for p in range(4) for t in range(5)]
    run(rds[:10])
    ms = []
    for p in range(4):
        for t in range(5):
            for e in range(2):
                d = vr(Acc(e, qh * 5 + t))
                m = mfma(d, ar(WoF(4 * u + p, e)), ar(aQ + (p * 5 + t) * 4), "0" if (first and p == 0) else d)
                if t == 0 and e == 0:
                    ms.append(lambda m=m, p=p: (k.wait(ds="%s_%d" % (tagbase, p)), k(m)))
                else:
                    ms.append(m)
    fl = spread(rds[10:], 10, per=1) + spread(extra, 30, per=2)
    interleave(k, ms, fl)


wl = []
for (u, slot) in WLATE:
    wl += rd_wo(u, slot, "wo")
chunk_mfmas(0, 0, True, wl, "o00")
chunk_mfmas(0, 1, True, [], "o01")
k("v_mov_b32 v%d, 1" % vT1)
k("s_lshl_b32 s%d, s%d, 2" % (sT0, sW))
k("v_mov_b32 v%d, s%d" % (vT0, sT0))
k("s_waitcnt vmcnt(0) lgkmcnt(0)")
stamp(10)
k("s_cmp_eq_u32 s%d, 1" % sXCC)
k("s_cbranch_scc0 L_f1_slow")
k("buffer_store_dword v%d, v%d, %s, s%d offen" % (vT1, vT0, sr(WS), sFL))
k("s_branch L_f1_done")
k.label("L_f1_slow")
k("buffer_store_dword v%d, v%d, %s, s%d offen sc1" % (vT1, vT0, sr(WS), sFL))
k.label("L_f1_done")
k("s_barrier")
k("v_bfe_u32 v%d, v%d, 2, 2" % (TMP, vL))
k("v_lshlrev_b32 v%d, 3, v%d" % (TMP, TMP))
k("v_xor_b32 v%d, s2, v%d" % (TMP, TMP))
k("v_lshlrev_b32 v%d, 8, v%d" % (TMP, TMP))
k("v_and_b32 v%d, 3, v%d" % (TMP + 1, vL))
k("v_lshl_add_u32 v%d, v%d, 2, v%d" % (TMP, TMP + 1, TMP))
k("s_mov_b32 s%d, 0x%x" % (sT2, FL_OFF))


def poll(name, vaddr, soff, inst_off=0):
    k("s_mov_b32 s%d, 0" % sCNT)
    k.label(name)
    k("buffer_load_dword v%d, v%d, %s, s%d offen offset:%d sc1" % (TMP + 1, vaddr, sr(WS), soff, inst_off))
    k("s_waitcnt vmcnt(0)")
    k("v_cmp_eq_u32 vcc, 0, v%d" % (TMP + 1))
    k("s_cbranch_vccz %s_ok" % name)
    k("s_add_u32 s%d, s%d, 1" % (sCNT, sCNT))
    k("s_cmp_lt_u32 s%d, %d" % (sCNT, SPIN))
    k("s_cbranch_scc1 %s" % name)
    k.label(name + "_ok")


poll("L_poll1", TMP, sT2)
stamp(11)


def dma_chunk(ci):
    qh, u = ci // 3, ci % 3 + 1
    tag = "C%d" % ci
    r = ["s_xor_b32 s%d, s2, %d" % (sT0, u << 3),
         "s_mul_i32 s%d, s%d, 40960" % (sT0, sT0),
         "s_add_u32 s%d, s%d, s%d" % (sT0, sT0, sWX),
         "s_add_u32 s%d, s%d, %d" % (sT0, sT0, OX_OFF + qh * 20480)]
    if ci < 5:
        r.append("s_add_u32 m0, s%d, %d" % (sWX, ci * 20480))
        for n in range(4):
            r.append(("buffer_load_dwordx4 v%d, %s, s%d offen offset:%d sc1 lds" % (vLin, sr(WS), sT0, n * 1024), tag))
        r.append("s_add_u32 m0, s%d, %d" % (sWX, ci * 20480 + 4096))
        r.append("s_add_u32 s%d, s%d, 4096" % (sT0, sT0))
        r.append(("buffer_load_dwordx4 v%d, %s, s%d offen sc1 lds" % (vLin, sr(WS), sT0), tag))
    else:
        for n in range(5):
            r.append("s_add_u32 s%d, s%d, %d" % (sT1, sWX, (100 + n) * 1024))
            r.append("s_cmp_ge_u32 s%d, %d" % (sT1, PBASE))
            r.append("s_cselect_b32 s%d, %d, 0" % (sT2, MISC - PBASE))
            r.append("s_add_u32 m0, s%d, s%d" % (sT1, sT2))
            if n:
                r.append("s_add_u32 s%d, s%d, 1024" % (sT0, sT0))
            r.append(("buffer_load_dwordx4 v%d, %s, s%d offen sc1 lds" % (vLin, sr(WS), sT0), tag))
    return r


PF = S0


def part_out(qh):
    r = []
    for t in range(5):
        qt = qh * 5 + t
        f = PF + qt * 4
        for e in range(2):
            d = Acc(e, qt)
            r.append("v_cvt_pk_bf16_f32 v%d, v%d, v%d" % (f + 2 * e, d, d + 1))
            r.append("v_cvt_pk_bf16_f32 v%d, v%d, v%d" % (f + 2 * e + 1, d + 2, d + 3))
        r.append("s_add_u32 s%d, s%d, %d" % (sT0, sSS, PX_OFF + qt * 1024))
        r.append(("buffer_store_dwordx4 %s, v%d, %s, s%d offen sc1" % (vr(f), vLin, sr(WS), sT0), "PS"))
    return r


k("s_mul_i32 s%d, s%d, 5120" % (sWX, sW))
run(dma_chunk(0))
run(dma_chunk(1))
for ci in range(6):
    k.wait(vm="C%d" % ci, force_ds0=True)
    k("s_barrier")
    if ci == 0:
        stamp(12)
    extra = dma_chunk(ci + 2) if ci + 2 < 6 else []
    if ci == 4:
        extra = part_out(0)
    chunk_mfmas(ci % 3 + 1, ci // 3, False, extra, "c%d" % ci)
run(part_out(1))
stamp(13)
k("s_lshr_b32 s%d, s%d, 1" % (sT1, sI))
k("v_and_b32 v%d, 7, v%d" % (TMP, vL))
k("s_and_b32 s%d, s2, 0xf8" % sT0)
k("v_or_b32 v%d, s%d, v%d" % (TMP, sT0, TMP))
k("v_lshlrev_b32 v%d, 8, v%d" % (TMP, TMP))
k("s_lshl_b32 s%d, s%d, 2" % (sT2, sT1))
k("s_add_u32 s%d, s%d, 0x%x" % (sT2, sT2, FL_OFF))
k("s_waitcnt vmcnt(0)")
k("buffer_store_dword v%d, v%d, %s, s%d offen offset:128 sc1" % (vT1, vT0, sr(WS), sFL))
poll("L_poll2", TMP, sT2, 128)
stamp(14)
k("s_mul_i32 s%d, s%d, 40960" % (sT0, sT0))
k("s_mul_i32 s%d, s%d, 5120" % (sT1, sI))
k("s_add_u32 s%d, s%d, s%d" % (sT0, sT0, sT1))
k("s_add_u32 s%d, s%d, 0x%x" % (sT0, sT0, PX_OFF))
k("s_lshl_b32 s%d, s%d, 10" % (sT1, sW))
k("v_add_u32 v%d, s%d, v%d" % (TMP, sT1, vLin))
k("s_lshl_b32 s%d, s%d, 8" % (sT1, sW))
k("s_add_u32 s%d, s%d, 4096" % (sT1, sT1))
k("v_lshl_add_u32 v%d, v%d, 2, s%d" % (TMP + 1, vL, sT1))
RB = 24
for n in range(8):
    k("buffer_load_dwordx4 %s, v%d, %s, s%d offen sc1" % (vr(RB + 4 * n), TMP, sr(WS), sT0), "R%d" % n)
    k("buffer_load_dword v%d, v%d, %s, s%d offen sc1" % (RB + 32 + n, TMP + 1, sr(WS), sT0), "R%d" % n)
    if n < 7:
        k("s_add_u32 s%d, s%d, 40960" % (sT0, sT0))
k("s_mul_i32 s%d, s%d, 160" % (sT0, sB))
k("s_and_b32 s%d, s%d, 1" % (sT1, sI))
k("s_mul_i32 s%d, s%d, 80" % (sT1, sT1))
k("s_add_u32 s%d, s%d, s%d" % (sT0, sT0, sT1))
k("s_lshl_b32 s%d, s%d, 10" % (sT0, sT0))
k("s_lshl_b32 s%d, s%d, 8" % (sT1, sC))
k("s_add_u32 s%d, s%d, s%d" % (sT0, sT0, sT1))
k("s_lshr_b32 s%d, s%d, 1" % (sT1, sI))
k("s_lshl_b32 s%d, s%d, 6" % (sT1, sT1))
k("s_add_u32 s%d, s%d, s%d" % (sT0, sT0, sT1))
k("s_lshl_b32 s%d, s%d, 14" % (sT1, sW))
k("s_add_u32 s%d, s%d, s%d" % (sT1, sT1, sT0))
k("v_and_b32 v%d, 15, v%d" % (TMP + 2, vL))
k("v_lshlrev_b32 v%d, 10, v%d" % (TMP + 2, TMP + 2))
k("v_and_b32 v%d, 0x30, v%d" % (TMP + 3, vL))
k("v_add_u32 v%d, v%d, v%d" % (TMP + 2, TMP + 2, TMP + 3))
k("s_lshl_b32 s%d, s%d, 4" % (sT2, sW))
k("s_add_u32 s%d, s%d, s%d" % (sT2, sT2, sT0))
k("s_add_u32 s%d, s%d, %d" % (sT2, sT2, 64 * 1024))
k("v_lshrrev_b32 v%d, 2, v%d" % (TMP + 3, vL))
k("v_lshlrev_b32 v%d, 10, v%d" % (TMP + 3, TMP + 3))
k("v_and_b32 v%d, 3, v%d" % (TMP + 4, vL))
k("v_lshl_add_u32 v%d, v%d, 2, v%d" % (TMP + 3, TMP + 4, TMP + 3))
SUM = 104
U = 120
k("s_mov_b32 s%d, 0xffff0000" % sCNT)
for n in range(8):
    k.wait(vm="R%d" % n)
    for d in range(5):
        src = RB + 4 * n + d if d < 4 else RB + 32 + n
        if n == 0:
            k("v_lshlrev_b32 v%d, 16, v%d" % (SUM + 2 * d, src))
            k("v_and_b32 v%d, s%d, v%d" % (SUM + 2 * d + 1, sCNT, src))
        else:
            k("v_lshlrev_b32 v%d, 16, v%d" % (U + 2 * d, src))
            k("v_and_b32 v%d, s%d, v%d" % (U + 2 * d + 1, sCNT, src))
            k("v_pk_add_f32 %s, %s, %s" % (vr(SUM + 2 * d, 2), vr(SUM + 2 * d, 2), vr(U + 2 * d, 2)))
for d in range(5):
    k("v_cvt_pk_bf16_f32 v%d, v%d, v%d" % (140 + d, SUM + 2 * d, SUM + 2 * d + 1))
k("buffer_store_dwordx4 %s, v%d, %s, s%d offen" % (vr(140), TMP + 2, sr(OUT), sT1))
k("buffer_store_dword v144, v%d, %s, s%d offen" % (TMP + 3, sr(OUT), sT2))
if OPT["stamps"]:
    k("s_waitcnt vmcnt(0)")
    stamp(15)
    k("s_waitcnt lgkmcnt(0)")
    for n in range(2 * NST):
        k("v_mov_b32 v%d, s%d" % (24 + n, STAMP0 + n))
    k("s_mul_i32 s%d, s2, %d" % (sT0, NST * 8))
    k("s_add_u32 s%d, s%d, 0x%x" % (sT0, sT0, STAMP_OFF))
    k("v_mov_b32 v%d, 0x%x" % (TMP, OOB))
    k("v_cmp_eq_u32 vcc, %d, v0" % (64 * (OPT["stamps"] - 1)))
    k("v_cndmask_b32 v%d, v%d, 0, vcc" % (TMP, TMP))
    for n in range(NST // 2):
        k("buffer_store_dwordx4 %s, v%d, %s, s%d offen offset:%d" % (vr(24 + 4 * n), TMP, sr(WS), sT0, 16 * n))
k.label("L_end")
k("s_endpgm")

k.label("L_regslow")
k("s_mov_b32 s%d, 0" % sCNT)
k.label("L_regspin")
k("v_lshlrev_b32 v%d, 2, v%d" % (vT0, vL))
k("buffer_load_dword v%d, v%d, %s, 0 offen sc1" % (vT1, vT0, sr(DBG)))
k("s_waitcnt vmcnt(0)")
k("v_and_b32 v%d, 0x80808080, v%d" % (TMP + 4, vT1))
k("v_cmp_ne_u32 vcc, v%d, v%d" % (TMP + 4, TMP + 5))
k("s_cbranch_vccz L_regok")
k("s_add_u32 s%d, s%d, 1" % (sCNT, sCNT))
k("s_cmp_lt_u32 s%d, %d" % (sCNT, SPIN))
k("s_cbranch_scc1 L_regspin")
k("s_branch L_regok")

if OPT["fallback"]:
    k.label("L_fallback")
    k("s_cmp_lg_u32 s%d, 0" % sPASS)
    k("s_cbranch_scc1 L_nofb")
    k("s_mov_b32 s%d, 1" % sPASS)
    k("s_waitcnt vmcnt(0) lgkmcnt(0)")
    k("s_barrier")
    MX = L0
    for t in range(5):
        k("v_mov_b32 v%d, 0xff800000" % (MX + t))
    k("s_lshl_b32 s%d, s%d, 11" % (sT0, sX))
    for n in range(4):
        k("v_subrev_u32 v%d, s%d, v%d" % (L0 + 8 + n, sT0, vKr[n]))
    k("s_mov_b32 s%d, 0" % sCNT)
    k.label("L_fb_loop")
    k("s_add_u32 m0, s%d, %d" % (sWT, KS[0]))
    k("s_nop 0")
    for n in range(4):
        k("buffer_load_dwordx4 v%d, %s, s%d offen offset:%d lds" % (vKd, sr(K_), sCNT, n * 1024))
    k("s_waitcnt vmcnt(0)")
    k("s_barrier")
    for kt in range(4):
        for n in range(4):
            k("ds_read_b128 %s, v%d offset:%d" % (ar(aVFO + 4 * n), L0 + 8 + n, KS[0] + kt * 1024))
        k("s_waitcnt lgkmcnt(0)")
        for half in range(2):
            for kk in range(2):
                kq = half * 2 + kk
                for t in range(5):
                    d = vr(S(half, t))
                    k(mfma(d, ar(aVFO + 4 * kq), ar(Qf(kq, t)), "0" if kk == 0 else d))
        for t in range(5):
            for n in range(4):
                k("v_add_f32 v%d, v%d, v%d" % (S(0, t) + n, S(0, t) + n, S(1, t) + n))
        for t in range(5):
            k("v_max3_f32 v%d, v%d, v%d, v%d" % (MX + t, MX + t, S(0, t), S(0, t) + 1))
            k("v_max3_f32 v%d, v%d, v%d, v%d" % (MX + t, MX + t, S(0, t) + 2, S(0, t) + 3))
    k("s_barrier")
    k("s_add_u32 s%d, s%d, 16384" % (sCNT, sCNT))
    k("s_cmp_lt_u32 s%d, 131072" % sCNT)
    k("s_cbranch_scc1 L_fb_loop")
    max_to_negm(lambda t: MX + t)
    for (wh, j, slot) in [("K", 0, KS[0]), ("K", 1, KS[1]), ("V", 0, VS[0]), ("K", 2, KS[2]), ("V", 1, VS[1]),
                          ("V", 2, VS[2])]:
        run(dma_kv(wh, j, slot))
    run(dma_wo(0, VS[3]))
    k("s_waitcnt vmcnt(0)")
    k("s_barrier")
    for kt in range(2):
        for kq in range(4):
            emit(k, rd_k(kt, kq, KS[0], "k"))
    k("s_waitcnt lgkmcnt(0)")
    k("s_branch L_attn")

out = (HDR + "; @launch grid=(256,1,1) block=(256,1,1) lds=163840\n"
       + '.amdgcn_target "amdgcn-amd-amdhsa--gfx950"\n' + k.text() + kernel_desc(KN, 512, 102, 256))
open(sys.argv[1], "w").write(out)
print("instructions:", sum(1 for i in k.ins if i.real), "pads:", getattr(k, "npad", 0), file=sys.stderr)
```

```python
import re

TRANS = ("v_exp_f32", "v_log_f32", "v_rcp_f32", "v_rsq_f32", "v_sqrt_f32", "v_sin_f32", "v_cos_f32")


def regs_of(op):
    op = op.strip()
    op = op.lstrip("-")
    if op.startswith("abs("):
        op = op[4:-1]
    m = re.fullmatch(r"([vas])\[(\d+):(\d+)\]", op)
    if m:
        return {(m.group(1), n) for n in range(int(m.group(2)), int(m.group(3)) + 1)}
    m = re.fullmatch(r"([vas])(\d+)", op)
    if m:
        return {(m.group(1), int(m.group(2)))}
    if op in ("vcc", "vcc_lo", "vcc_hi"):
        return {("s", "vcc")}
    if op == "m0":
        return {("s", "m0")}
    if op in ("exec",):
        return {("s", "exec")}
    return set()


class Ins:
    def __init__(self, text):
        self.text = text
        t = text.split(";")[0].strip()
        self.is_label = t.endswith(":")
        self.is_dir = t.startswith(".")
        self.real = bool(t) and not self.is_label and not self.is_dir
        self.mn = t.split()[0] if self.real else ""
        rest = t[len(self.mn):].strip() if self.real else ""
        ops = [o.strip() for o in re.split(r",(?![^\[]*\])", rest)] if rest else []
        if ops:
            parts = ops[-1].split()
            self.mods = parts[1:]
            ops[-1] = parts[0] if parts else ""
        else:
            self.mods = []
        self.ops = ops
        mn = self.mn
        self.mfma = mn.startswith("v_mfma")
        self.valu = mn.startswith("v_") and not self.mfma
        self.ds = mn.startswith("ds_")
        self.vmem = mn.startswith("buffer_") or mn.startswith("global_")
        self.salu = mn.startswith("s_")
        self.trans = mn.replace("_e32", "") in TRANS
        self.wr = set()
        self.rd = set()
        R = [regs_of(o) for o in ops]
        self.srcC = set()
        self.srcAB = set()
        if self.mfma:
            self.wr = R[0]
            self.srcAB = R[1] | R[2]
            self.srcC = R[3]
            self.rd = self.srcAB | self.srcC
        elif self.valu:
            if mn.startswith("v_permlane"):
                self.wr = R[0] | R[1]
                self.rd = R[0] | R[1]
            elif mn.startswith("v_cmp"):
                self.wr = R[0]
                for r in R[1:]:
                    self.rd |= r
            else:
                self.wr = R[0]
                for r in R[1:]:
                    self.rd |= r
                if mn.startswith("v_fmac") or mn.startswith("v_dot2c"):
                    self.rd |= R[0]
        elif self.ds:
            if mn.startswith("ds_read"):
                self.wr = R[0]
                self.rd = R[1]
            else:
                for r in R:
                    self.rd |= r
        elif self.vmem:
            lds = "lds" in self.mods
            if mn in ("buffer_wbl2", "buffer_inv"):
                pass
            elif "load" in mn and not lds:
                self.wr = R[0]
                for r in R[1:]:
                    self.rd |= r
            else:
                for r in R:
                    self.rd |= r
                if lds:
                    self.rd |= {("s", "m0")}
            self.lds = lds
        elif self.salu:
            if mn in ("s_waitcnt", "s_barrier", "s_nop", "s_endpgm", "s_sleep", "s_setprio") or mn.startswith("s_cbranch") or mn == "s_branch":
                pass
            elif mn.startswith("s_cmp"):
                for r in R:
                    self.rd |= r
            else:
                self.wr = R[0] if R else set()
                for r in R[1:]:
                    self.rd |= r

    def states(self):
        if not self.real:
            return 0
        if self.mn == "s_nop":
            return int(self.ops[0], 0) + 1
        return 1


class KB:
    def __init__(self):
        self.ins = []
        self.dsq = []
        self.vmq = []

    def __call__(self, text, tag=None):
        for line in text.split("\n"):
            self._emit(line, tag)

    def _emit(self, line, tag):
        i = Ins(line)
        if i.real:
            for (t, w) in self.dsq + self.vmq:
                if w & (i.rd | i.wr):
                    raise RuntimeError("'%s' touches registers of an outstanding load (tag %s)" % (line, t))
        self._pad(i)
        self.ins.append(i)
        if i.ds:
            self.dsq.append((tag, i.wr))
        elif i.vmem:
            self.vmq.append((tag, i.wr))
        elif i.mn == "s_waitcnt":
            m = re.search(r"lgkmcnt\((\d+)\)", line)
            if m:
                n = int(m.group(1))
                self.dsq = self.dsq[len(self.dsq) - n:] if n < len(self.dsq) and n > 0 else ([] if n == 0 else self.dsq)
            m = re.search(r"vmcnt\((\d+)\)", line)
            if m:
                n = int(m.group(1))
                self.vmq = self.vmq[len(self.vmq) - n:] if n < len(self.vmq) and n > 0 else ([] if n == 0 else self.vmq)

    def label(self, n):
        self.ins.append(Ins(n + ":"))

    def _need(self, q, tags, cap):
        last = -1
        for k, (t, _) in enumerate(q):
            if t in tags:
                last = k
        if last < 0:
            return None
        return min(len(q) - 1 - last, cap)

    def wait(self, ds=(), vm=(), force_ds0=False):
        if isinstance(ds, str):
            ds = (ds,)
        if isinstance(vm, str):
            vm = (vm,)
        nd = self._need(self.dsq, set(ds), 14)
        if force_ds0 and self.dsq:
            nd = 0
        nv = self._need(self.vmq, set(vm), 62)
        parts = []
        if nv is not None:
            parts.append("vmcnt(%d)" % nv)
        if nd is not None:
            parts.append("lgkmcnt(%d)" % nd)
        if parts:
            self("s_waitcnt " + " ".join(parts))

    def _pad(self, c):
        if not c.real:
            return
        need = 0
        dist = 0
        for p in reversed(self.ins):
            if dist >= 20:
                break
            if not p.real:
                continue
            req = self._req(p, c)
            if req > dist:
                need = max(need, req - dist)
            dist += p.states()
        if need > 0:
            n = Ins("s_nop %d" % (need - 1))
            self.ins.append(n)
            self.npad = getattr(self, "npad", 0) + 1

    @staticmethod
    def _req(p, c):
        vr = lambda s: {x for x in s if x[0] in "va"}
        sr = lambda s: {x for x in s if x[0] == "s"}
        req = 0
        if p.mfma:
            passes = 4 if "16x16x32" in p.mn else 8
            big = {4: 8, 8: 12}[passes]
            if c.mfma:
                if p.wr & c.srcAB:
                    req = max(req, big)
                if p.wr & c.srcC and p.wr != c.srcC:
                    req = max(req, big - 2)
                if p.wr & c.wr and not (p.wr == c.srcC):
                    req = max(req, big)
            elif c.valu or c.ds or c.vmem:
                if p.wr & (c.rd | c.wr):
                    req = max(req, big)
                if c.valu and (p.srcC & c.wr):
                    req = max(req, {4: 3, 8: 7}[passes])
        if p.valu:
            if c.mfma and (vr(p.wr) & c.rd):
                req = max(req, 2)
            if p.trans and c.valu and not c.trans and (p.wr & c.rd):
                req = max(req, 1)
            if p.trans and (c.ds or c.vmem) and (p.wr & c.rd):
                req = max(req, 1)
            if c.mn.startswith("v_permlane") and (vr(p.wr) & c.rd):
                req = max(req, 2)
            if c.mn.startswith("v_readfirstlane") or c.mn.startswith("v_readlane"):
                if vr(p.wr) & c.rd:
                    req = max(req, 1)
            if sr(p.wr):
                if c.vmem and (sr(p.wr) & c.rd):
                    req = max(req, 5)
                if c.valu and (sr(p.wr) & c.rd):
                    req = max(req, 2)
                if c.salu and (sr(p.wr) & c.rd):
                    req = max(req, 1)
                if c.mn.startswith("s_cbranch_vcc") and ("s", "vcc") in p.wr:
                    req = max(req, 1)
        if p.salu and ("s", "m0") in p.wr and c.vmem and getattr(c, "lds", False):
            req = max(req, 1)
        if p.vmem and "store" in p.mn and ("x4" in p.mn or "x3" in p.mn):
            data = regs_of(p.ops[0])
            if (c.valu or c.mfma or c.ds or c.vmem) and (data & c.wr):
                req = max(req, 2)
        return req

    def text(self):
        out = []
        for i in self.ins:
            if i.is_label or i.is_dir:
                out.append(i.text)
            else:
                out.append("    " + i.text)
        return "\n".join(out) + "\n"


def interleave(k, mfmas, fillers, per_gap=None):
    for n, m in enumerate(mfmas):
        if callable(m):
            m()
        else:
            k(m)
        if n < len(fillers):
            for f in fillers[n]:
                emit(k, f)
    for n in range(len(mfmas), len(fillers)):
        for f in fillers[n]:
            emit(k, f)


def emit(k, f):
    if callable(f):
        f()
    elif isinstance(f, tuple):
        k(f[0], f[1])
    else:
        k(f)


def spread(items, ngaps, per=2, start=0):
    g = [[] for _ in range(ngaps)]
    n = start
    for it in items:
        while n < ngaps - 1 and len(g[n]) >= per:
            n += 1
        g[n].append(it)
    return g


class Sched:
    COST = dict(e=2, v=1, d=1, g=1, w=5, s=0, z=0)
    ORD = dict(s=0, d=1, g=1, w=1, v=2, e=2)

    def __init__(self, k, mfmas):
        self.k = k
        self.m = list(mfmas)
        self.n = len(self.m)
        self.g = [[] for _ in range(self.n)]
        self.used = [0] * self.n
        self.ns = [0] * self.n
        self.pre = [[] for _ in range(self.n)]
        self.post = [[] for _ in range(self.n)]

    def fits(self, i, kind):
        if kind == "s":
            return self.ns[i] == 0
        if kind == "w":
            return self.used[i] == 0
        return self.used[i] + self.COST[kind] <= 2

    def put(self, i, item, kind):
        i = min(i, self.n - 1)
        self.g[i].append((kind, item))
        if kind == "s":
            if self.ns[i]:
                self.used[i] += 1
            self.ns[i] += 1
        else:
            self.used[i] += self.COST[kind]
        return i

    def place(self, item, kind, lo, hi=None):
        hi = self.n - 1 if hi is None else min(hi, self.n - 1)
        lo = min(lo, hi)
        for i in range(lo, hi + 1):
            if self.fits(i, kind):
                return self.put(i, item, kind)
        return self.put(hi, item, kind)

    def chain(self, items, lo, step=0, hi=None):
        pos = lo
        lastheavy = None
        prevkind = None
        hi = self.n - 1 if hi is None else min(hi, self.n - 1)
        over = False
        for (it, kind) in items:
            p = pos
            if prevkind is not None and self.ORD[kind] < self.ORD[prevkind]:
                p = pos + 1
            if kind in "gw" and lastheavy is not None:
                p = max(p, lastheavy + step)
            if not over and not any(self.fits(i, kind) for i in range(p, hi + 1)):
                over = True
            if over:
                self.post[hi].append((kind, it))
                self.used[hi] += max(1, self.COST[kind])
                pos = hi
                continue
            p = self.place(it, kind, p, hi)
            if kind in "gw":
                lastheavy = p
            pos = p
            prevkind = kind
        return pos

    def need(self, i, ds=(), vm=(), barrier=False, ds0=False):
        self.pre[i].append((ds, vm, barrier, ds0))

    def emit(self):
        k = self.k

        def dopre(i):
            for (ds, vm, barrier, ds0) in self.pre[i]:
                k.wait(ds=ds, vm=vm, force_ds0=ds0)
                if barrier:
                    k("s_barrier")
        dopre(0)
        for i in range(self.n):
            k(self.m[i])
            items = sorted([x for x in self.g[i] if x[0] != "z"], key=lambda x: self.ORD[x[0]])
            items += self.post[i] + [x for x in self.g[i] if x[0] == "z"]
            late = False
            if i + 1 < self.n:
                tags = {it[1] for (kd, it) in items if isinstance(it, tuple)}
                for (ds, vm, barrier, ds0) in self.pre[i + 1]:
                    want = set((ds,) if isinstance(ds, str) else ds) | set((vm,) if isinstance(vm, str) else vm)
                    if (want & tags) or ((barrier or ds0) and any(kd in "dw" for (kd, it) in items)):
                        late = True
                if any(kd == "z" for (kd, it) in items):
                    late = True
                if not late:
                    dopre(i + 1)
            for (kd, it) in items:
                emit(k, it)
            if late:
                dopre(i + 1)

    def cost(self):
        return sum(16 + 4 * max(0, u - 2) for u in self.used)
```

```python
import sys
from lib import NAME, HDR, STAMP_OFF, kernel_desc
from kb import KB, Sched, emit

OPT = dict(stamps=0, force_slow=0, fallback=1, rot=1, codepf=1, prof=0, cyc=0, flag_gap=40, poll_gap=58, chk_gap=72)
for a in sys.argv[2:]:
    kk, vv = a.split("=")
    OPT[kk] = int(vv)

KN = NAME + "_kernel"
k = KB()

KS = [0, 16384, 32768]
VBASE = 49152
VS = [49152, 65536, 81920, 98304]
PBASE = 114688
MISC = 155648
STG = 53248
STG_SZ = 36864
def stg_buf(s): return (s + 1) % 3
OX_OFF = 0
PX_OFF = 16 << 20
FL_OFF = 32 << 20
OOB = 0x40000000
SPIN = 400000

vL, vKd, vVd, vOd, vPw, vPr = 1, 2, 3, 4, 5, 6
vKr = [7, 8, 9, 10]
vVo = [11, 12, 13, 14]
vVp = [15, 16, 17, 18]
vWor = [19, 20]
vLin = 21
vN = 22
BANK0, QOWN, O0, NEGM, L0, TMP = 24, 84, 124, 204, 224, 244
aPPAR, aVFP, aONES, aQP, aWO, aKF, aVFO = 0, 20, 36, 40, 80, 208, 240
QACC = 124
vXd = [24, 25, 26, 27, 28]
vWd = [29, 30, 31, 32]
vXr = [[33, 34], [35, 36]]
vWr = [[37, 38], [39, 40]]
aXF = [80, 116, 152]
aWF = [100, 136, 172]

sW = 3
X, K_, V_, WQ, WO, OUT, DBG, WS = 20, 24, 28, 32, 36, 40, 44, 48
sI, sB, sC, sX, sQH, sSS, sT0, sT1, sT2, sWT, sWX, sWW = 52, 53, 54, 55, 56, 57, 58, 59, 60, 61, 62, 63
sPASS, sCNT, sFL, sXCC, sSC0, sSC1 = 64, 65, 66, 67, 68, 69
sN0, sN1 = 4, 5
sU0, sU1, sU2, sU3 = 6, 7, 8, 9
STAMP0 = 70
NST = 16


def vr(b, n=4): return "v[%d:%d]" % (b, b + n - 1)
def ar(b, n=4): return "a[%d:%d]" % (b, b + n - 1)
def sr(b, n=4): return "s[%d:%d]" % (b, b + n - 1)


def stamp_txt(i, prof=0):
    if OPT["stamps"] and (OPT["prof"] == prof or i == 0):
        return "%s s[%d:%d]" % ("s_memtime" if OPT["cyc"] else "s_memrealtime", STAMP0 + 2 * i, STAMP0 + 2 * i + 1)
    return None


def stamp(i, prof=0):
    t = stamp_txt(i, prof)
    if t:
        k(t)


def mfma(d, a, b, c):
    return "v_mfma_f32_16x16x32_bf16 %s, %s, %s, %s" % (d, a, b, c)


def srd(d, base, off_sreg, total):
    if off_sreg is None:
        k("s_mov_b32 s%d, s%d" % (d, base))
        k("s_and_b32 s%d, s%d, 0xffff" % (d + 1, base + 1))
        k("s_mov_b32 s%d, 0x%x" % (d + 2, total))
    else:
        k("s_add_u32 s%d, s%d, s%d" % (d, base, off_sreg))
        k("s_addc_u32 s%d, s%d, 0" % (d + 1, base + 1))
        k("s_and_b32 s%d, s%d, 0xffff" % (d + 1, d + 1))
        k("s_sub_u32 s%d, 0x%x, s%d" % (d + 2, total, off_sreg))
    k("s_mov_b32 s%d, 0x20000" % (d + 3))


def S(j, kt, t): return BANK0 + (20 * (j & 1) if kt == 0 else 40) + 4 * t
def Pown(j, t): return BANK0 + 20 * (j & 1) + 4 * t
def On(dt, t): return O0 + (dt * 5 + t) * 4
def Qf(kq, t): return vr(QOWN + (kq * 5 + t) * 4) if kq < 2 else ar(aQP + ((kq - 2) * 5 + t) * 4)
def Kf(kt, kq): return aKF + (kt * 4 + kq) * 4
def WoF(ksg, e): return aWO + (ksg * 2 + e) * 4


def dma_kv(which, j, slot):
    s, vd = (K_, vKd) if which == "K" else (V_, vVd)
    tag = "%s%d" % (which, j)
    r = [("s_add_u32 m0, s%d, %d" % (sWT, slot), "s"), ("s_mov_b32 s%d, %d" % (sT0, j * 16384), "s")]
    for n in range(4):
        r.append((("buffer_load_dwordx4 v%d, %s, s%d offen offset:%d nt lds" % (vd, sr(s), sT0, n * 1024), tag), "g"))
    return r


def dma_wo(u, slot):
    tag = "W%d" % u
    r = [("s_add_u32 m0, s%d, %d" % (sWT, slot), "s")]
    for n in range(4):
        r.append(("s_add_u32 s%d, s%d, %d" % (sT2, sU0 + (u >> 1), (u & 1) * 65536 + 3072 * n), "s"))
        r.append((("buffer_load_dwordx4 v%d, %s, s%d offen offset:%d lds" % (vOd, sr(WO), sT2, n * 1024), tag), "g"))
    return r


def dma_stage(s):
    tag = "S%d" % s
    buf = stg_buf(s) * STG_SZ
    r = [("s_lshl_b32 s%d, s%d, 7" % (sT0, sSS), "s"),
         ("s_add_u32 m0, s%d, %d" % (sWX, buf), "s"),
         ("s_lshl_b32 s%d, s%d, 19" % (sT1, sSS), "s")]
    for n in range(4):
        r.append((("buffer_load_dwordx4 v%d, %s, s%d offen offset:%d lds" % (vXd[n], sr(X), sT0, n * 1024), tag), "g"))
    r.append(("s_add_u32 m0, s%d, %d" % (sWX, buf + 4096), "s"))
    r.append(("s_add_u32 s%d, s%d, 1" % (sSS, sSS), "s"))
    r.append((("buffer_load_dwordx4 v%d, %s, s%d offen lds" % (vXd[4], sr(X), sT0), tag), "g"))
    r.append(("s_add_u32 m0, s%d, %d" % (sWW, buf), "s"))
    r.append(("s_and_b32 s%d, s%d, 7" % (sSS, sSS), "s"))
    for n in range(4):
        r.append((("buffer_load_dwordx4 v%d, %s, s%d offen offset:%d lds" % (vWd[n], sr(WQ), sT1, n * 1024), tag), "g"))
    return r


def run(lst):
    for f in lst:
        if isinstance(f, tuple) and len(f) == 2 and isinstance(f[1], str) and len(f[1]) == 1 and f[1] in "evdgws":
            f = f[0]
        emit(k, f)


def rd_k(kt, kq, slot, tag):
    return ("ds_read_b128 %s, v%d offset:%d" % (ar(Kf(kt, kq)), vKr[kq], slot + kt * 1024), tag)


def rd_v(own, dt, e2, slot, tag):
    off = slot - VBASE + e2 * 1024
    return ("ds_read_b64_tr_b16 %s, v%d offset:%d" % (ar((aVFO if own else aVFP) + dt * 4 + e2 * 2, 2),
                                                     (vVo if own else vVp)[dt], off), tag)


def rd_ppar(j, t, tag):
    return ("ds_read_b128 %s, v%d offset:%d" % (ar(aPPAR + 4 * t), vPr, (j & 1) * 5120 + t * 1024), tag)


def wr_pown(j, t, tag):
    return ("ds_write_b128 v%d, %s offset:%d" % (vPw, vr(Pown(j, t)), (j & 1) * 5120 + t * 1024), tag)


def rd_wo(u, slot, tag):
    r = []
    va, off = (vWor[0], slot) if slot < VBASE else (vWor[1], slot - VBASE)
    for pp in range(2):
        for e in range(2):
            for e2 in range(2):
                r.append(("ds_read_b64_tr_b16 %s, v%d offset:%d" % (
                    ar(WoF(2 * u + pp, e) + 2 * e2, 2), va, off + (32 * pp + 16 * e2) * 256 + 8 * e), tag))
    return r


def exp_(j, kt, t, r_):
    s = S(j, kt, t) + r_
    return "v_exp_f32 v%d, v%d" % (s, s)


def cvt_p(j, t, n):
    s = S(j, n >> 1, t) + (n & 1) * 2
    return "v_cvt_pk_bf16_f32 v%d, v%d, v%d" % (Pown(j, t) + n, s, s + 1)


k(".text")
k(".globl %s" % KN)
k(".p2align 8")
k(".type %s,@function" % KN)
k.label(KN)
k("s_cmp_ge_u32 s2, 256")
k("s_cbranch_scc1 L_end")
stamp(0)
k("s_load_dwordx8 s[4:11], s[0:1], 0")
k("s_load_dwordx8 s[12:19], s[0:1], 32")
k("s_memrealtime s[%d:%d]" % (sSC0, sSC1))
k("v_lshrrev_b32 v%d, 6, v0" % vN)
k("v_and_b32 v%d, 63, v0" % vL)
k("v_readfirstlane_b32 s%d, v%d" % (sW, vN))
k("s_and_b32 s%d, s2, 7" % sI)
k("s_lshr_b32 s%d, s2, 5" % sB)
k("s_bfe_u32 s%d, s2, 0x20003" % sC)
k("s_and_b32 s%d, s%d, 1" % (sX, sW))
if OPT["rot"]:
    k("s_lshl_b32 s%d, s%d, 1" % (sSS, sC))
    k("s_add_u32 s%d, s%d, s%d" % (sSS, sSS, sB))
    k("s_and_b32 s%d, s%d, 7" % (sSS, sSS))
else:
    k("s_mov_b32 s%d, 0" % sSS)
k("s_lshl_b32 s%d, s%d, 12" % (sWT, sW))
k("s_mul_i32 s%d, s%d, 5120" % (sWX, sW))
k("s_add_u32 s%d, s%d, %d" % (sWX, sWX, STG))
k("s_add_u32 s%d, s%d, %d" % (sWW, sWT, STG + 20480))
g_, i16, r_, cc = TMP, TMP + 1, TMP + 2, TMP + 3
t0, t1, t2 = TMP + 4, TMP + 5, TMP + 6
k("v_lshrrev_b32 v%d, 4, v%d" % (g_, vL))
k("v_and_b32 v%d, 15, v%d" % (i16, vL))
k("v_and_b32 v%d, 7, v%d" % (t0, vL))
k("v_xor_b32 v%d, v%d, v%d" % (t0, t0, g_))
k("s_lshl_b32 s%d, s%d, 2" % (sT0, sX))
k("v_xor_b32 v%d, s%d, v%d" % (t0, sT0, t0))
k("v_lshlrev_b32 v%d, 4, v%d" % (t0, t0))
k("v_lshrrev_b32 v%d, 3, v%d" % (t1, vL))
k("v_lshl_add_u32 v%d, v%d, 10, v%d" % (vXd[0], t1, t0))
k("v_xor_b32 v%d, 64, v%d" % (t0, vXd[0]))
k("v_add_u32 v%d, %d, v%d" % (vXd[1], 7168, t0))
k("v_add_u32 v%d, %d, v%d" % (vXd[2], 2 * 7168, vXd[0]))
k("v_add_u32 v%d, %d, v%d" % (vXd[3], 3 * 7168, t0))
k("v_add_u32 v%d, %d, v%d" % (vXd[4], 4 * 8192, vXd[0]))
k("v_lshlrev_b32 v%d, 2, v%d" % (t0, g_))
k("v_xor_b32 v%d, v%d, v%d" % (t0, t0, i16))
k("v_lshlrev_b32 v%d, 4, v%d" % (t0, t0))
k("v_lshl_add_u32 v%d, v%d, 13, v%d" % (vWd[0], g_, t0))
k("v_lshl_add_u32 v%d, v%d, 10, v%d" % (vOd, g_, t0))
for n in range(1, 4):
    k("v_add_u32 v%d, %d, v%d" % (vWd[n], n * (32768 - 1024), vWd[0]))
k("s_mul_i32 s%d, s%d, 163840" % (sT0, sB))
k("s_mul_i32 s%d, s%d, 40960" % (sT1, sW))
k("s_add_u32 s%d, s%d, s%d" % (sT0, sT0, sT1))
k("s_lshl_b32 s%d, s%d, 2" % (sT2, sI))
k("s_add_u32 s%d, s%d, s%d" % (sT2, sT2, sC))
k("s_lshl_b32 s%d, s%d, 8" % (sCNT, sT2))
k("s_lshl_b32 s%d, s%d, 17" % (sT1, sW))
k("s_add_u32 s%d, s%d, s%d" % (sCNT, sCNT, sT1))
k("s_waitcnt lgkmcnt(0)")
srd(X, 4, sT0, 8 * 160 * 512 * 2)
srd(WQ, 10, sCNT, 512 * 4096 * 2)
run(dma_stage(0))
if OPT["codepf"]:
    k("s_getpc_b64 s[%d:%d]" % (sT0, sT1))
    k("v_lshlrev_b32 v%d, 7, v0" % t1)
    k("global_load_dword v%d, v%d, s[%d:%d]" % (TMP + 7, t1, sT0, sT1), "CP")
k("s_lshl_b32 s%d, s%d, 5" % (sT0, sB))
k("s_add_u32 s%d, s%d, s%d" % (sT0, sT0, sT2))
k("s_lshl_b32 s%d, s%d, 17" % (sT0, sT0))
k("s_add_u32 s%d, s%d, s%d" % (sT2, sT0, sWT))
srd(K_, 6, sT2, 8 * 32 * 512 * 128 * 2)
srd(V_, 8, sT2, 8 * 32 * 512 * 128 * 2)
k("s_lshl_b32 s%d, s%d, 19" % (sT0, sI))
k("s_lshl_b32 s%d, s%d, 8" % (sT1, sC))
k("s_add_u32 s%d, s%d, s%d" % (sT0, sT0, sT1))
k("s_lshl_b32 s%d, s%d, 14" % (sT1, sW))
k("s_add_u32 s%d, s%d, s%d" % (sT0, sT0, sT1))
srd(WO, 12, sT0, 4096 * 512 * 2)
srd(OUT, 14, None, 8 * 160 * 512 * 2)
srd(DBG, 16, None, 256)
srd(WS, 18, None, 268435456)
k("s_or_b32 s%d, s%d, 1" % (sSC0, sSC0))
k("s_or_b32 s%d, s%d, 0x80000000" % (sSC1, sSC1))
k("v_mov_b32 v%d, s%d" % (vN, sSC0))
k("v_mov_b32 v%d, s%d" % (vN + 1, sSC1))
k("v_or_b32 v%d, s2, v0" % t1)
k("v_lshlrev_b32 v%d, 8, v%d" % (t1, t1))
k("buffer_store_dwordx2 %s, v%d, %s, 0 offen sc1" % (vr(vN, 2), t1, sr(DBG)), "NS")
k("s_getreg_b32 s%d, hwreg(HW_REG_XCC_ID, 0, 4)" % sXCC)
k("s_lshr_b32 s%d, s%d, 1" % (sQH, sW))
k("s_mov_b32 s%d, 0" % sPASS)
k("s_lshl_b32 s%d, s2, 9" % sFL)
k("s_add_u32 s%d, s%d, 0x%x" % (sFL, sFL, FL_OFF))
for n in range(4):
    k("s_xor_b32 s%d, s%d, %d" % (sU0 + n, sC, n))
    k("s_lshl_b32 s%d, s%d, 17" % (sU0 + n, sU0 + n))
k("v_bfe_u32 v%d, v%d, 2, 2" % (r_, vL))
k("v_and_b32 v%d, 3, v%d" % (cc, vL))
k("v_lshlrev_b32 v%d, 4, v%d" % (vLin, vL))
k("s_lshl_b32 s%d, s%d, 2" % (sT0, sW))
k("v_xor_b32 v%d, v%d, v%d" % (t0, i16, g_))
k("v_xor_b32 v%d, s%d, v%d" % (t1, sT0, t0))
k("v_lshlrev_b32 v%d, 4, v%d" % (t1, t1))
k("v_lshl_add_u32 v%d, v%d, 8, v%d" % (vKd, g_, t1))
k("s_lshl_b32 s%d, s%d, 3" % (sT0, sX))
k("v_lshlrev_b32 v%d, 1, v%d" % (t1, g_))
k("v_xor_b32 v%d, v%d, v%d" % (t1, t1, i16))
k("v_xor_b32 v%d, s%d, v%d" % (t1, sT0, t1))
k("v_lshlrev_b32 v%d, 4, v%d" % (t1, t1))
k("v_lshl_add_u32 v%d, v%d, 8, v%d" % (vVd, g_, t1))
k("v_lshrrev_b32 v%d, 1, v%d" % (t1, i16))
k("v_xor_b32 v%d, v%d, v%d" % (t1, t1, g_))
k("v_lshlrev_b32 v%d, 4, v%d" % (t1, t1))
k("v_lshl_add_u32 v%d, v%d, 7, v%d" % (t1, i16, t1))
k("s_mul_i32 s%d, s%d, 10240" % (sT0, sQH))
k("s_add_u32 s%d, s%d, %d" % (sT0, sT0, STG))
k("v_add_u32 v%d, s%d, v%d" % (vXr[0][0], sT0, t1))
k("v_xor_b32 v%d, 64, v%d" % (vXr[0][1], vXr[0][0]))
k("v_add_u32 v%d, %d, v%d" % (vXr[1][0], 2 * STG_SZ, vXr[0][0]))
k("v_add_u32 v%d, %d, v%d" % (vXr[1][1], 2 * STG_SZ, vXr[0][1]))
k("s_lshl_b32 s%d, s%d, 1" % (sT0, sX))
k("v_xor_b32 v%d, s%d, v%d" % (t1, sT0, r_))
k("v_lshl_add_u32 v%d, v%d, 2, v%d" % (t1, t1, cc))
k("v_lshlrev_b32 v%d, 4, v%d" % (t1, t1))
k("v_lshl_add_u32 v%d, v%d, 3, v%d" % (t2, g_, r_))
k("v_lshl_add_u32 v%d, v%d, 8, v%d" % (t1, t2, t1))
k("v_add_u32 v%d, %d, v%d" % (vWr[0][0], STG + 20480, t1))
k("v_xor_b32 v%d, 64, v%d" % (vWr[0][1], vWr[0][0]))
k("v_add_u32 v%d, %d, v%d" % (vWr[1][0], 2 * STG_SZ, vWr[0][0]))
k("v_add_u32 v%d, %d, v%d" % (vWr[1][1], 2 * STG_SZ, vWr[0][1]))
k("v_lshlrev_b32 v%d, 4, v%d" % (t1, t0))
k("s_lshl_b32 s%d, s%d, 7" % (sT0, sX))
k("v_xor_b32 v%d, s%d, v%d" % (t1, sT0, t1))
k("v_lshl_add_u32 v%d, v%d, 12, v%d" % (t1, r_, t1))
k("v_lshl_add_u32 v%d, v%d, 8, v%d" % (t1, cc, t1))
k("s_lshl_b32 s%d, s%d, 11" % (sT1, sX))
k("v_add_u32 v%d, s%d, v%d" % (vKr[0], sT1, t1))
for n in range(1, 4):
    k("v_xor_b32 v%d, %d, v%d" % (vKr[n], 64 * n, vKr[0]))
k("v_and_b32 v%d, 1, v%d" % (t1, g_))
k("v_lshlrev_b32 v%d, 3, v%d" % (t1, t1))
k("v_lshl_add_u32 v%d, v%d, 1, v%d" % (t1, r_, t1))
k("v_lshrrev_b32 v%d, 1, v%d" % (t2, cc))
k("v_xor_b32 v%d, v%d, v%d" % (t1, t1, t2))
k("s_lshl_b32 s%d, s%d, 3" % (sT0, sX))
k("v_xor_b32 v%d, s%d, v%d" % (t1, sT0, t1))
k("v_lshlrev_b32 v%d, 4, v%d" % (t1, t1))
k("v_and_b32 v%d, 1, v%d" % (t2, cc))
k("v_lshl_add_u32 v%d, v%d, 3, v%d" % (t1, t2, t1))
k("v_lshl_add_u32 v%d, v%d, 8, v%d" % (t1, r_, t1))
k("v_lshl_add_u32 v%d, v%d, 12, v%d" % (t1, g_, t1))
k("s_add_u32 s%d, s%d, %d" % (sT1, sT1, VBASE))
k("v_add_u32 v%d, s%d, v%d" % (vVo[0], sT1, t1))
for n in range(1, 4):
    k("v_xor_b32 v%d, %d, v%d" % (vVo[n], 32 * n, vVo[0]))
for n in range(4):
    k("v_xor_b32 v%d, 2048, v%d" % (vVp[n], vVo[n]))
k("v_xor_b32 v%d, s%d, v%d" % (t1, sW, r_))
k("v_lshl_add_u32 v%d, v%d, 2, v%d" % (t1, t1, cc))
k("v_lshlrev_b32 v%d, 4, v%d" % (t1, t1))
k("v_lshl_add_u32 v%d, v%d, 2, v%d" % (t2, g_, r_))
k("v_lshl_add_u32 v%d, v%d, 8, v%d" % (vWor[0], t2, t1))
k("v_add_u32 v%d, %d, v%d" % (vWor[1], VBASE, vWor[0]))
k("s_mul_i32 s%d, s%d, 10240" % (sT0, sW))
k("s_add_u32 s%d, s%d, %d" % (sT0, sT0, PBASE))
k("v_add_u32 v%d, s%d, v%d" % (vPr, sT0, vLin))
k("s_xor_b32 s%d, s%d, 1" % (sT0, sW))
k("s_mul_i32 s%d, s%d, 10240" % (sT0, sT0))
k("s_add_u32 s%d, s%d, %d" % (sT0, sT0, PBASE))
k("v_add_u32 v%d, s%d, v%d" % (vPw, sT0, vLin))
k("v_mov_b32 v%d, 0x3f803f80" % t1)
for n in range(4):
    k("v_accvgpr_write_b32 a%d, v%d" % (aONES + n, t1))
k("s_mov_b32 s%d, 0x%x" % (sSC0, 0x3e0293ee))
k("s_mov_b32 s%d, s%d" % (sSC1, sSC0))
run(dma_stage(1))
stamp(1)

QP_EXTRA = {0: [("K", 0, KS[0])], 2: [("K", 1, KS[1])], 4: [("K", 2, KS[2])],
            6: [("V", 0, VS[0]), ("V", 1, VS[1])], 7: [("W", 0, VS[3]), ("V", 2, VS[2])]}


if OPT.get("latek"):
    QP_EXTRA = {5: [("K", 0, KS[0])], 6: [("K", 1, KS[1]), ("K", 2, KS[2]), ("V", 0, VS[0])],
                7: [("V", 1, VS[1]), ("W", 0, VS[3]), ("V", 2, VS[2])]}


def tiles(lst):
    r = []
    for (wh, n, slot) in lst:
        r += dma_wo(n, slot) if wh == "W" else dma_kv(wh, n, slot)
    return r


def qp_reads(s, ks, st):
    b = stg_buf(s)
    win, off = (1, 0) if b == 2 else (0, b * STG_SZ)
    r = []
    for p in range(2):
        for e in range(2):
            for e2 in range(2):
                r.append(("ds_read_b64_tr_b16 %s, v%d offset:%d" % (
                    ar(aWF[st] + (p * 2 + e) * 4 + 2 * e2, 2), vWr[win][p], off + ks * 8192 + e2 * 1024 + 8 * e),
                    "f%d_%d" % (s, ks)))
    xs = [("ds_read_b128 %s, v%d offset:%d" % (ar(aXF[st] + t * 4), vXr[win][ks], off + t * 2048), "f%d_%d" % (s, ks))
          for t in range(5)]
    return r[:2] + xs + r[2:]


def qp_mfma(st, tl, t, first=False):
    d = vr(QACC + (tl * 5 + t) * 4)
    return mfma(d, ar(aWF[st] + tl * 4), ar(aXF[st] + t * 4), "0" if first else d)


def qp_group(st, first=False):
    return [qp_mfma(st, tl, t, first) for tl in range(4) for t in range(5)]


def qfin(p, t, packed):
    f = QOWN + (p * 5 + t) * 4
    r = []
    for e in range(2):
        d = QACC + ((p * 2 + e) * 5 + t) * 4
        if packed:
            r.append(("v_pk_mul_f32 %s, %s, s[%d:%d]" % (vr(d, 2), vr(d, 2), sSC0, sSC1), "v"))
            r.append(("v_pk_mul_f32 %s, %s, s[%d:%d]" % (vr(d + 2, 2), vr(d + 2, 2), sSC0, sSC1), "v"))
        else:
            for n in range(4):
                r.append(("v_mul_f32 v%d, s%d, v%d" % (d + n, sSC0, d + n), "v"))
        r.append(("v_cvt_pk_bf16_f32 v%d, v%d, v%d" % (f + 2 * e, d, d + 1), "v"))
        r.append(("v_cvt_pk_bf16_f32 v%d, v%d, v%d" % (f + 2 * e + 1, d + 2, d + 3), "v"))
    r.append((("ds_write_b128 v%d, %s offset:%d" % (vPr, vr(f), (p * 5 + t) * 1024), "qw"), "w"))
    return r


for s in range(8):
    k.wait(vm="S%d" % s, force_ds0=True)
    k("s_barrier")
    if s == 0:
        stamp(2)
    stamp(1 + s, 2)
    dma = (dma_stage(s + 2) if s + 2 < 8 else []) + tiles(QP_EXTRA.get(s, []))
    if s == 7:
        dma = [("v_mov_b32 v%d, 0" % TMP, "v"),
               (("buffer_load_dwordx2 %s, v%d, %s, 0 offen sc1" % (vr(vN, 2), TMP, sr(DBG)), "NL"), "g")] + dma
    if s == 0:
        run(qp_reads(0, 0, 0))
        sc = Sched(k, qp_group(0, True))
        sc.need(0, ds="f0_0")
        for n, rd in enumerate(qp_reads(0, 1, 1)):
            sc.place(rd, "d", n)
        sc.chain(dma, 0, step=1)
        sc.emit()
    elif s < 7:
        sc = Sched(k, qp_group(1) + qp_group(0))
        for n, rd in enumerate(qp_reads(s, 0, 0)):
            sc.place(rd, "d", n)
        sc.need(20, ds="f%d_0" % s)
        for n, rd in enumerate(qp_reads(s, 1, 1)):
            sc.place(rd, "d", 20 + n)
        sc.chain(dma, 0, step=OPT.get("qstep", 3))
        sc.emit()
    else:
        ms = qp_group(1)
        order = [(p, t) for p in range(2) for t in range(5)]
        for (p, t) in order:
            ms += [qp_mfma(0, 2 * p, t), qp_mfma(0, 2 * p + 1, t), qp_mfma(2, 2 * p, t), qp_mfma(2, 2 * p + 1, t)]
        sc = Sched(k, ms)
        rds = qp_reads(7, 0, 0) + qp_reads(7, 1, 2)
        for n, rd in enumerate(rds):
            sc.place(rd, "d", (n * 2) // 3)
        sc.need(20, ds=("f7_0", "f7_1"), vm="K0", barrier=True, ds0=True)
        sc.chain(dma, 0, step=3)
        pos = 28
        nin = 4
        for (p, t) in order[:nin]:
            pos = sc.chain(qfin(p, t, False), pos) + 1
        sc.emit()
        for (p, t) in order[nin:]:
            run(qfin(p, t, True))
stamp(3)
stamp(9, 2)
k("s_lshl_b32 s%d, s%d, 11" % (sT0, sX))
for n in range(4):
    k("v_subrev_u32 v%d, s%d, v%d" % (TMP + n, sT0, vKr[n]))
for n in range(4):
    k("ds_read_b128 %s, v%d offset:%d" % (ar(aVFO + 4 * n), TMP + n, KS[0]), "mk")
k.wait(vm=("K1",), force_ds0=True)
k("s_barrier")
stamp(10, 2)
qr = [("ds_read_b128 %s, v%d offset:%d" % (Qf(2 + p, t), vPw, (p * 5 + t) * 1024), "qr") for p in range(2) for t in range(5)]
run(qr[:4])
ms = []
for half in range(2):
    for kk in range(2):
        kq = half * 2 + kk
        for t in range(5):
            d = vr(S(1, half, t))
            ms.append(mfma(d, ar(aVFO + 4 * kq), Qf(kq, t), "0" if kk == 0 else d))
sc = Sched(k, ms)
for n, rd in enumerate(qr[4:]):
    sc.place(rd, "d", n)
sc.need(10, ds="qr")
for n, rd in enumerate([rd_k(kt, kq, KS[0], "k") for kt in range(2) for kq in range(4)]):
    sc.place(rd, "d", 10 + n)
sc.emit()


def max_to_negm(src):
    for t in range(5):
        k("v_mov_b32 v%d, v%d" % (TMP + 5 + t, src(t)))
    for t in range(5):
        k("v_permlane16_swap_b32 v%d, v%d" % (src(t), TMP + 5 + t))
    for t in range(5):
        k("v_max_f32 v%d, v%d, v%d" % (src(t), src(t), TMP + 5 + t))
    for t in range(5):
        k("v_mov_b32 v%d, v%d" % (TMP + 5 + t, src(t)))
    for t in range(5):
        k("v_permlane32_swap_b32 v%d, v%d" % (src(t), TMP + 5 + t))
    for t in range(5):
        k("v_max_f32 v%d, v%d, v%d" % (src(t), src(t), TMP + 5 + t))
    for t in range(5):
        for n in range(4):
            k("v_sub_f32 v%d, 0, v%d" % (NEGM + 4 * t + n, src(t)))


for t in range(5):
    for n in (0, 2):
        k("v_pk_add_f32 %s, %s, %s" % (vr(S(1, 0, t) + n, 2), vr(S(1, 0, t) + n, 2), vr(S(1, 1, t) + n, 2)))
for t in range(5):
    k("v_max3_f32 v%d, v%d, v%d, v%d" % (TMP + t, S(1, 0, t), S(1, 0, t) + 1, S(1, 0, t) + 2))
for t in range(5):
    k("v_max_f32 v%d, v%d, v%d" % (TMP + t, TMP + t, S(1, 0, t) + 3))
max_to_negm(lambda t: TMP + t)
stamp(11, 2)

k.label("L_attn")


def qk_mfmas(j):
    ms = []
    for t in range(5):
        for kt in range(2):
            for kq in range(4):
                d = vr(S(j, kt, t))
                ms.append(mfma(d, ar(Kf(kt, kq)), Qf(kq, t), vr(NEGM + 4 * t) if kq == 0 else d))
    return ms


def softmax_items(j, t):
    return ([(exp_(j, 0, t, r), "e") for r in range(4)] + [(cvt_p(j, t, 0), "v"), (cvt_p(j, t, 1), "v")]
            + [(exp_(j, 1, t, r), "e") for r in range(4)] + [(cvt_p(j, t, 2), "v"), (cvt_p(j, t, 3), "v")]
            + [(wr_pown(j, t, "pw"), "w")])


sc = Sched(k, qk_mfmas(0))
sc.need(0, ds="k")
pos = 8
for t in range(3):
    pos = sc.chain(softmax_items(0, t), pos) + 1
sc.emit()
run([rd_k(kt, kq, KS[1], "k") for kt in range(2) for kq in range(4)])
for t in range(3, 5):
    run(softmax_items(0, t))
stamp(4)
stamp(12, 2)

ISSUE = {
    0: [("K", 3, KS[0])],
    1: [("W", 1, VS[3]), ("K", 4, KS[1]), ("V", 3, VS[0])],
    2: [("K", 5, KS[2]), ("V", 4, VS[1])],
    3: [("W", 2, VS[3]), ("K", 6, KS[0]), ("V", 5, VS[2])],
    4: [("K", 7, KS[1]), ("V", 6, VS[0])],
    5: [("W", 3, VS[3]), ("W", 4, KS[2]), ("V", 7, VS[1])],
    6: [("W", 5, KS[0]), ("W", 6, VS[2])],
    7: [("W", 7, KS[1])],
}
WREAD = {0: [(0, VS[3])], 2: [(1, VS[3])], 4: [(2, VS[3])]}
WLATE = [(3, VS[3]), (4, KS[2]), (5, KS[0]), (6, VS[2]), (7, KS[1])]


def pv(j, own, dt, t, first=False):
    d = vr(On(dt, t))
    a = ar((aVFO if own else aVFP) + 4 * dt)
    b = vr(Pown(j, t)) if own else ar(aPPAR + 4 * t)
    return mfma(d, a, b, "0" if first else d)


def lsum(j, t, first=False):
    d = vr(L0 + 4 * t)
    return mfma(d, ar(aONES), vr(Pown(j, t)), "0" if first else d)


for j in range(7):
    need = ["K%d" % (j + 1), "V%d" % j] + ["W%d" % u for (u, _) in WREAD.get(j, [])]
    if j == 0:
        need.append("NL")
    if j in (1, 2, 3):
        stamp({1: 1, 2: 6, 3: 11}[j], 1)
    k.wait(vm=need, force_ds0=True)
    k("s_barrier")
    if j in (0, 3, 6):
        stamp({0: 5, 3: 6, 6: 7}[j])
    if j in (1, 2):
        stamp(2 + 5 * (j - 1), 1)
    kslot = KS[(j + 1) % 3]
    vslot = VS[j % 3]
    nA = 10 if j > 0 else 0
    ms = [pv(j - 1, False, dt, t) for dt in (2, 3) for t in range(5)] if j > 0 else []
    ms += qk_mfmas(j + 1)
    for t in range(5):
        ms += [pv(j, True, dt, t, first=(j == 0)) for dt in range(4)] + [lsum(j, t, first=(j == 0))]
    ms += [pv(j, False, dt, t) for dt in (0, 1) for t in range(5)]
    sc = Sched(k, ms)
    if j in (1, 2):
        for (gp, si) in ((9, 3), (49, 4), (74, 5)):
            t_ = stamp_txt(si + 5 * (j - 1), 1)
            if t_:
                sc.put(gp, t_, "s")
    if j == 0:
        k("v_readfirstlane_b32 s%d, v%d" % (sN0, vN))
        k("v_readfirstlane_b32 s%d, v%d" % (sN1, vN + 1))
        k("s_and_b32 s%d, s%d, 1" % (sT0, sN0))
        k("s_lshr_b32 s%d, s%d, 31" % (sT1, sN1))
        k("s_and_b32 s%d, s%d, s%d" % (sT0, sT0, sT1))
        k("s_cbranch_scc0 L_nonce_slow")
        k.label("L_nonce_ok")
    else:
        kreads = [rd_k(kt, kq, kslot, "k%d" % kt) for kt in range(2) for kq in range(4)]
        run(kreads[:2])
        sc.put(0, kreads[2], "d")
        sc.put(0, kreads[3], "d")
        for n in range(4):
            sc.put(1 + n, kreads[4 + n], "d")
        sc.need(nA, ds="k0")
        sc.need(nA + 4, ds="k1")
    p0 = nA + 7
    slots = []
    for t in range(5):
        it = softmax_items(j + 1, t)
        for n, (x, kind) in enumerate(it):
            sc.put(p0 + 13 * t + n, x, kind)
            if kind == "v":
                slots.append(p0 + 13 * t + n)
    vo = [rd_v(True, dt, e2, vslot, "vo") for dt in range(4) for e2 in range(2)]
    vp = [rd_v(False, dt, e2, vslot, "vp") for dt in range(4) for e2 in range(2)]
    pr = [rd_ppar(j, t, "pr") for t in range(5)]
    wr = []
    for (u, slot) in WREAD.get(j, []):
        wr += rd_wo(u, slot, "wo")
    dma = tiles(ISSUE[j])
    if j == 1:
        dma = [("s_add_u32 s%d, s%d, s%d" % (sT1, sN0, sXCC), "s"),
               ("v_mov_b32 v%d, s%d" % (vN, sT1), "v"),
               ("v_mov_b32 v%d, s%d" % (vN + 1, sN1), "v"),
               ("v_mov_b32 v%d, 0" % TMP, "v"),
               (("buffer_store_dwordx2 %s, v%d, %s, s%d offen offset:384 sc1" % (vr(vN, 2), TMP, sr(WS), sFL), "RS"), "g")] + dma
    if j == 5:
        dma = [("v_and_b32 v%d, 3, v%d" % (TMP, vL), "v"),
               ("v_lshlrev_b32 v%d, 3, v%d" % (TMP, TMP), "v"),
               ("v_xor_b32 v%d, s2, v%d" % (TMP, TMP), "v"),
               ("v_lshlrev_b32 v%d, 9, v%d" % (TMP, TMP), "v"),
               ("s_mov_b32 s%d, 0x%x" % (sT1, FL_OFF), "s"),
               (("buffer_load_dwordx2 %s, v%d, %s, s%d offen offset:384 sc1" % (vr(TMP + 10, 2), TMP, sr(WS), sT1), "RL"), "g")] + dma
    sc.chain(dma, 1, step=4 if len(ISSUE[j]) < 3 else 3)
    for rd in vo + vp[:4] + wr:
        sc.place(rd, "d", 1, nA + 38)
    for rd in vp[4:] + pr:
        sc.place(rd, "d", nA, nA + 60)
    sc.need(nA + 40, ds="vo")
    sc.need(nA + 65, ds=("vp", "pr"))
    if OPT.get("verbose"):
        print("iter", j, "model cycles", sc.cost(), file=sys.stderr)
    sc.emit()

sc = Sched(k, [lsum(7, t) for t in range(5)])
sc.chain([("s_mul_i32 s%d, s%d, 1280" % (sT0, sW), "s"),
          ("s_add_u32 s%d, s%d, %d" % (sT0, sT0, MISC), "s"),
          ("s_xor_b32 s%d, s%d, 1" % (sT1, sW), "s"),
          ("s_mul_i32 s%d, s%d, 1280" % (sT1, sT1), "s"),
          ("s_add_u32 s%d, s%d, %d" % (sT1, sT1, MISC), "s")], 0)
sc.emit()
k("v_lshl_add_u32 v%d, v%d, 2, s%d" % (TMP, vL, sT0))
k("v_lshl_add_u32 v%d, v%d, 2, s%d" % (TMP + 1, vL, sT1))
k("s_lshl_b32 s%d, s%d, 2" % (sT1, sW))
k("s_add_u32 s%d, s%d, %d" % (sT1, sT1, MISC + 5120))
k("v_add_u32 v%d, s%d, v%d" % (TMP + 2, sT1, vLin))
k("v_add_u32 v%d, %d, v%d" % (TMP + 3, MISC + 5120, vLin))
k("s_mul_i32 s%d, s2, 40960" % sT0)
k("s_mul_i32 s%d, s%d, 10240" % (sT1, sW))
k("s_add_u32 s%d, s%d, s%d" % (sSS, sT0, sT1))
k("v_max3_f32 v%d, v%d, v%d, v%d" % (TMP + 4, L0, L0 + 4, L0 + 8))
k("v_max3_f32 v%d, v%d, v%d, v%d" % (TMP + 4, TMP + 4, L0 + 12, L0 + 16))
for t in range(5):
    k("ds_write_b32 v%d, v%d offset:%d" % (TMP, L0 + 4 * t, t * 256), "lw")
k("ds_write_b32 v%d, v%d" % (TMP + 2, TMP + 4), "lw")

k.wait(vm=["V7", "RL"], force_ds0=True)
k("s_barrier")
stamp(8)
stamp(1, 3)
vslot = VS[7 % 3]
vo = [rd_v(True, dt, e2, vslot, "vo") for dt in range(4) for e2 in range(2)]
vp = [rd_v(False, dt, e2, vslot, "vp") for dt in range(4) for e2 in range(2)]
pr = [rd_ppar(7, t, "pr%d" % t) for t in range(5)]
lr = [("ds_read_b128 %s, v%d" % (vr(TMP + 4), TMP + 3), "lm")]
lr += [("ds_read_b32 v%d, v%d offset:%d" % (L0 + 4 * t + 1, TMP + 1, t * 256), "lr") for t in range(5)]
ms = [pv(6, False, dt, t) for dt in (2, 3) for t in range(5)]
ms += [pv(7, True, dt, t) for t in range(5) for dt in range(4)]
sc = Sched(k, ms)
run(vo[:2])
for rd in vo[2:] + lr + vp[:4]:
    sc.place(rd, "d", 0)
sc.need(10, ds="vo")
for rd in vp[4:] + pr:
    sc.place(rd, "d", 10)
sc.chain(tiles(ISSUE[7]), 8, step=4)
sc.need(16, ds=("lm", "lr"))
chk = [("v_max3_f32 v%d, v%d, v%d, v%d" % (TMP + 4, TMP + 4, TMP + 5, TMP + 6), "v"),
       ("v_max_f32 v%d, v%d, v%d" % (TMP + 4, TMP + 4, TMP + 7), "v"),
       ("v_cmp_lt_f32 vcc, 0x4e800000, v%d" % (TMP + 4), "v")]
chk += [("v_add_f32 v%d, v%d, v%d" % (L0 + 4 * t, L0 + 4 * t, L0 + 4 * t + 1), "v") for t in range(5)]
chk += [("v_rcp_f32 v%d, v%d" % (L0 + 4 * t, L0 + 4 * t), "e") for t in range(5)]
chk += [("v_cmp_ne_u64 s[%d:%d], %s, %s" % (sT0, sT1, vr(vN, 2), vr(TMP + 10, 2)), "v")]
sc.chain(chk, 16)
sc.emit()
if OPT["fallback"]:
    k("s_cbranch_vccnz L_fallback")
k.label("L_nofb")
k("s_or_b32 s%d, s%d, s%d" % (sCNT, sT0, sT1))
if OPT["force_slow"]:
    k("s_mov_b32 s%d, 1" % sCNT)
k("s_cmp_eq_u32 s%d, 0" % sCNT)
k("s_cbranch_scc0 L_pub_slow")

OF = BANK0


def fin(t, packed, fl):
    r = []
    for pp in range(2):
        f = OF + (pp * 5 + t) * 4
        for e in range(2):
            d = On(2 * pp + e, t)
            if packed:
                r.append(("v_pk_mul_f32 %s, %s, %s op_sel_hi:[1,0]" % (vr(d, 2), vr(d, 2), vr(L0 + 4 * t, 2)), "v"))
                r.append(("v_pk_mul_f32 %s, %s, %s op_sel_hi:[1,0]" % (vr(d + 2, 2), vr(d + 2, 2), vr(L0 + 4 * t, 2)), "v"))
            else:
                for n in range(4):
                    r.append(("v_mul_f32 v%d, v%d, v%d" % (d + n, d + n, L0 + 4 * t), "v"))
            r.append(("v_cvt_pk_bf16_f32 v%d, v%d, v%d" % (f + 2 * e, d, d + 1), "v"))
            r.append(("v_cvt_pk_bf16_f32 v%d, v%d, v%d" % (f + 2 * e + 1, d + 2, d + 3), "v"))
        n = pp * 5 + t
        r.append(("s_add_u32 s%d, s%d, %d" % (sT0, sSS, OX_OFF + n * 1024), "s"))
        r.append((("buffer_store_dwordx4 %s, v%d, %s, s%d offen%s" % (vr(f), vLin, sr(WS), sT0, fl), "OS"), "w"))
    return r


def publish(fl):
    ms = [pv(7, False, dt, t) for t in range(5) for dt in range(4)]
    sc = Sched(k, ms)
    for t in range(5):
        sc.need(4 * t, ds=("vp", "pr%d" % t))
    sc.chain(fin(0, False, fl), 7)
    sc.emit()
    for t in range(1, 5):
        run(fin(t, True, fl))


sv = (list(k.vmq), list(k.dsq))
publish("")
k("s_branch L_pub_done")
k.label("L_pub_slow")
k.vmq, k.dsq = list(sv[0]), list(sv[1])
k("s_nop 7")
publish(" sc1")
k.label("L_pub_done")
stamp(9)
stamp(2, 3)
for n in range(10):
    k("ds_write_b128 v%d, %s offset:%d" % (vPr, vr(OF + 4 * n), n * 1024), "ow")
vO = [vLin, vKr[0], vKr[1]]
k("v_add_u32 v%d, 0x10000, v%d" % (vO[1], vLin))
k("v_add_u32 v%d, 0x20000, v%d" % (vO[2], vLin))
k.wait(vm=["W3", "W4", "W5", "W6", "W7"], force_ds0=True)
k("s_barrier")
stamp(3, 3)

ACC = O0
def Acc(e, qt): return ACC + (e * 10 + qt) * 4
aOB = 0


def chunk_addr(u, qh, f):
    if u == 0:
        return PBASE + (qh * 20 + f) * 1024
    lin = (qh * 3 + (u - 1)) * 20 + f
    return lin * 1024 if lin < 112 else MISC + (lin - 112) * 1024


def rd_o(u, qh, f, tag):
    addr = chunk_addr(u, qh, f)
    return ("ds_read_b128 %s, v%d offset:%d" % (ar(aOB + 4 * f), vO[addr >> 16], addr & 0xffff), tag)


def chunk_ms(u, qh):
    ms = []
    for p in range(4):
        for t in range(5):
            for e in range(2):
                d = vr(Acc(e, qh * 5 + t))
                ms.append(mfma(d, ar(WoF(4 * u + p, e)), ar(aOB + (p * 5 + t) * 4), "0" if (u == 0 and p == 0) else d))
    return ms


def dma_chunk(ci):
    qh, u = ci // 3, ci % 3 + 1
    tag = "C%d" % ci
    r = [("s_add_u32 s%d, s%d, %d" % (sT0, sU0 + u, OX_OFF + qh * 20480), "s")]
    if ci < 5:
        r.append(("s_add_u32 m0, s%d, %d" % (sWX, ci * 20480), "s"))
        r.append(("s_add_u32 s%d, s%d, 4096" % (sT1, sT0), "s"))
        for n in range(4):
            r.append((("buffer_load_dwordx4 v%d, %s, s%d offen offset:%d sc1 lds" % (vLin, sr(WS), sT0, n * 1024), tag), "g"))
        r.append(("s_add_u32 m0, s%d, %d" % (sWX, ci * 20480 + 4096), "s"))
        r.append(("s_nop 0", "s"))
        r.append((("buffer_load_dwordx4 v%d, %s, s%d offen sc1 lds" % (vLin, sr(WS), sT1), tag), "g"))
    else:
        for n in range(5):
            r.append(("s_add_u32 s%d, s%d, %d" % (sT1, sWX, (100 + n) * 1024), "s"))
            r.append(("s_cmp_ge_u32 s%d, %d" % (sT1, PBASE), "s"))
            r.append(("s_cselect_b32 s%d, %d, 0" % (sT2, MISC - PBASE), "s"))
            r.append(("s_add_u32 m0, s%d, s%d" % (sT1, sT2), "s"))
            r.append(("s_add_u32 s%d, s%d, %d" % (sT2, sT0, n * 1024), "s"))
            r.append((("buffer_load_dwordx4 v%d, %s, s%d offen sc1 lds" % (vLin, sr(WS), sT2), tag), "g"))
    return r


PF = BANK0


def part_out(qh):
    r = []
    for t in range(5):
        qt = qh * 5 + t
        f = PF + qt * 4
        for e in range(2):
            d = Acc(e, qt)
            r.append(("v_cvt_pk_bf16_f32 v%d, v%d, v%d" % (f + 2 * e, d, d + 1), "v"))
            r.append(("v_cvt_pk_bf16_f32 v%d, v%d, v%d" % (f + 2 * e + 1, d + 2, d + 3), "v"))
        r.append(("s_add_u32 s%d, s%d, %d" % (sT0, sSS, PX_OFF + qh * 20480 + t * 1024), "s"))
        r.append((("buffer_store_dwordx4 %s, v%d, %s, s%d offen sc1" % (vr(f), vLin, sr(WS), sT0), "P%d" % qh), "w"))
    return r


vF = TMP
vPoll = TMP + 1
vP2 = TMP + 2
vPD = TMP + 4

ms = chunk_ms(0, 0) + chunk_ms(0, 1)
G1 = OPT["chk_gap"]
sc = Sched(k, ms[:G1])
run([rd_o(0, 0, f, "o0_%d" % (f // 5)) for f in range(5)])
for f in range(5, 20):
    sc.place(rd_o(0, 0, f, "o0_%d" % (f // 5)), "d", f - 5)
for p in range(4):
    sc.need(10 * p, ds="o0_%d" % p)
for f in range(20):
    sc.place(rd_o(0, 1, f, "o1_%d" % (f // 5)), "d", 22 + 2 * f if f >= 5 else 22 + f)
for p in range(4):
    if 40 + 10 * p < G1:
        sc.need(40 + 10 * p, ds="o1_%d" % p)
wl = []
for (u, slot) in WLATE:
    wl += rd_wo(u, slot, "wo")
for rd in wl:
    sc.place(rd, "d", 0)
setup = [("s_lshl_b32 s%d, s%d, 3" % (sT0, sW), "s"),
         ("s_mul_i32 s%d, s%d, 5120" % (sWX, sW), "s")]
for u in (1, 2, 3):
    setup += [("s_xor_b32 s%d, s2, %d" % (sU0 + u, u << 3), "s"),
              ("s_mul_i32 s%d, s%d, 40960" % (sU0 + u, sU0 + u), "s"),
              ("s_add_u32 s%d, s%d, s%d" % (sU0 + u, sU0 + u, sWX), "s")]
setup += [("s_mul_i32 s%d, s2, 40960" % sSS, "s"),
          ("s_add_u32 s%d, s%d, s%d" % (sSS, sSS, sWX), "s"),
          ("s_mov_b32 s%d, 0x%x" % (sU0, FL_OFF), "s"),
          ("v_mov_b32 v%d, s%d" % (vF, sT0), "v"),
          ("v_mov_b32 v%d, s%d" % (vN, sN0), "v"),
          ("v_bfe_u32 v%d, v%d, 2, 2" % (vPoll, vL), "v"),
          ("v_lshlrev_b32 v%d, 3, v%d" % (vPoll, vPoll), "v"),
          ("v_xor_b32 v%d, s2, v%d" % (vPoll, vPoll), "v"),
          ("v_lshlrev_b32 v%d, 9, v%d" % (vPoll, vPoll), "v"),
          ("v_and_b32 v%d, 3, v%d" % (vPD, vL), "v"),
          ("v_lshl_add_u32 v%d, v%d, 3, v%d" % (vPoll, vPD, vPoll), "v")]
endset = sc.chain(setup, 0)
FG = max(OPT["flag_gap"], endset + 1)


def flag1():
    k("s_waitcnt vmcnt(0)")
    k("s_cmp_eq_u32 s%d, 0" % sCNT)
    k("s_cbranch_scc0 L_f1_slow")
    k("buffer_store_dwordx2 %s, v%d, %s, s%d offen" % (vr(vN, 2), vF, sr(WS), sFL), "F1")
    k.label("L_f1_done")
    stamp(10)
    stamp(4, 3)


sc.put(FG, flag1, "g")
sc.need(OPT["poll_gap"], ds="wo", barrier=True)
sc.put(OPT["poll_gap"], ("buffer_load_dwordx2 %s, v%d, %s, s%d offen sc1" % (vr(vPD, 2), vPoll, sr(WS), sU0), "PL"), "g")
sc.emit()
k.wait(vm="PL")
k("v_cmp_ne_u64 vcc, %s, %s" % (vr(vN, 2), vr(vPD, 2)))
k("s_cbranch_vccnz L_poll1")
k.label("L_poll1_ok")
stamp(11)
stamp(5, 3)
rest = ms[G1:]
nr = len(rest)
ms2 = list(rest)
for ci in range(6):
    ms2 += chunk_ms(ci % 3 + 1, ci // 3)
sc = Sched(k, ms2)
for p in range(4):
    if 40 + 10 * p >= G1:
        sc.need(40 + 10 * p - G1, ds="o1_%d" % p)
run(dma_chunk(0))
sc.chain(dma_chunk(1), 0, step=1, hi=nr - 1)
for ci in range(6):
    base = nr + 40 * ci
    u, qh = ci % 3 + 1, ci // 3
    if ci == 0:
        def first_chunk():
            k.wait(vm="C0")
            k("s_barrier")
            stamp(12)
            stamp(6, 3)
            run([rd_o(1, 0, f, "c0_%d" % (f // 5)) for f in range(10)])
        sc.put(nr - 1, first_chunk, "z")
        for f in range(10, 20):
            sc.place(rd_o(u, qh, f, "c0_%d" % (f // 5)), "d", base + f - 10)
    else:
        sc.need(base - 18, vm="C%d" % ci, barrier=True)
        for f in range(20):
            sc.place(rd_o(u, qh, f, "c%d_%d" % (ci, f // 5)), "d", base - 18 + (f if f < 5 else 2 * f))
    for p in range(4):
        sc.need(base + 10 * p, ds="c%d_%d" % (ci, p))
    if ci + 2 < 6:
        sc.chain(dma_chunk(ci + 2), base, step=3)
sc.chain(part_out(0), nr + 40 * 4 - 4, step=3)
vRd, vOutA = TMP + 6, TMP + 7
ta, tb = TMP + 8, TMP + 9
l2 = [("v_and_b32 v%d, 31, v%d" % (vP2, vL), "v"),
      ("v_lshrrev_b32 v%d, 2, v%d" % (ta, vP2), "v"),
      ("s_and_b32 s%d, s2, 0xf8" % sU1, "s"),
      ("v_or_b32 v%d, s%d, v%d" % (ta, sU1, ta), "v"),
      ("v_lshlrev_b32 v%d, 9, v%d" % (ta, ta), "v"),
      ("v_and_b32 v%d, 3, v%d" % (vP2, vL), "v"),
      ("v_lshl_add_u32 v%d, v%d, 3, v%d" % (vP2, vP2, ta), "v"),
      ("s_mul_i32 s%d, s%d, 160" % (sU2, sI), "s"),
      ("s_mul_i32 s%d, s%d, 40" % (sU3, sW), "s"),
      ("s_add_u32 s%d, s%d, s%d" % (sU2, sU2, sU3), "s"),
      ("v_add_u32 v%d, s%d, v%d" % (ta, sU2, vL), "v"),
      ("v_lshlrev_b32 v%d, 4, v%d" % (vRd, ta), "v"),
      ("v_lshrrev_b32 v%d, 6, v%d" % (tb, ta), "v"),
      ("v_mul_u32_u24 v%d, 52, v%d" % (vOutA, tb), "v"),
      ("v_lshrrev_b32 v%d, 8, v%d" % (vOutA, vOutA), "v"),
      ("v_mad_i32_i24 v%d, v%d, -5, v%d" % (tb, vOutA, tb), "v"),
      ("v_lshlrev_b32 v%d, 6, v%d" % (vOutA, vOutA), "v"),
      ("v_lshl_add_u32 v%d, v%d, 14, v%d" % (vOutA, tb, vOutA), "v"),
      ("v_and_b32 v%d, 15, v%d" % (tb, ta), "v"),
      ("v_lshl_add_u32 v%d, v%d, 10, v%d" % (vOutA, tb, vOutA), "v"),
      ("v_and_b32 v%d, 0x30, v%d" % (tb, ta), "v"),
      ("v_add_u32 v%d, v%d, v%d" % (vOutA, vOutA, tb), "v"),
      ("v_mov_b32 v%d, 0x%x" % (tb, OOB), "v"),
      ("v_cmp_gt_u32 vcc, 40, v%d" % vL, "v"),
      ("s_mul_i32 s%d, s%d, 40960" % (sU1, sU1), "s"),
      ("s_add_u32 s%d, s%d, 0x%x" % (sU1, sU1, PX_OFF), "s"),
      ("v_cndmask_b32 v%d, v%d, v%d, vcc" % (vRd, tb, vRd), "v"),
      ("v_cndmask_b32 v%d, v%d, v%d, vcc" % (vOutA, tb, vOutA), "v"),
      ("s_mul_i32 s%d, s%d, 163840" % (sU2, sB), "s"),
      ("s_lshl_b32 s%d, s%d, 8" % (sU3, sC), "s"),
      ("s_add_u32 s%d, s%d, s%d" % (sU2, sU2, sU3), "s"),
      ("s_mov_b32 s%d, 0xffff0000" % sU3, "s")]
sc.chain(l2, nr + 40 * 5)


def flagA():
    k.wait(vm="P0")
    k("buffer_store_dwordx2 %s, v%d, %s, s%d offen offset:128 sc1" % (vr(vN, 2), vF, sr(WS), sFL), "FA")


sc.put(nr + 40 * 5 + 36, flagA, "g")
if OPT.get("verbose"):
    print("outproj model cycles", sc.cost(), file=sys.stderr)
sc.emit()
stamp(7, 3)
run(part_out(1))
stamp(13)


def poll(name, off):
    k("s_mov_b32 s%d, 0" % sCNT)
    k.label(name)
    k("buffer_load_dwordx2 %s, v%d, %s, s%d offen offset:%d sc1" % (vr(vPD, 2), vP2, sr(WS), sU0, off))
    k("s_waitcnt vmcnt(0)")
    k("v_cmp_ne_u64 vcc, %s, %s" % (vr(vN, 2), vr(vPD, 2)))
    k("s_cbranch_vccz %s_ok" % name)
    k("s_add_u32 s%d, s%d, 1" % (sCNT, sCNT))
    k("s_cmp_lt_u32 s%d, %d" % (sCNT, SPIN))
    k("s_cbranch_scc1 %s" % name)
    k.label(name + "_ok")


RB = 64
SUM = 100
U = 110


def red_loads(qh):
    for n in range(8):
        k("s_add_u32 s%d, s%d, %d" % (sT0, sU1, n * 40960 + qh * 20480))
        k("buffer_load_dwordx4 %s, v%d, %s, s%d offen sc1" % (vr(RB + 4 * n), vRd, sr(WS), sT0), "R%d" % n)


def red_sum(qh):
    for n in range(8):
        k.wait(vm="R%d" % n)
        for d in range(4):
            src = RB + 4 * n + d
            dst = SUM if n == 0 else U
            k("v_lshlrev_b32 v%d, 16, v%d" % (dst + 2 * d, src))
            k("v_and_b32 v%d, s%d, v%d" % (dst + 2 * d + 1, sU3, src))
        if n:
            for d in range(4):
                k("v_pk_add_f32 %s, %s, %s" % (vr(SUM + 2 * d, 2), vr(SUM + 2 * d, 2), vr(U + 2 * d, 2)))
    for d in range(4):
        k("v_cvt_pk_bf16_f32 v%d, v%d, v%d" % (120 + d, SUM + 2 * d, SUM + 2 * d + 1))
    k("s_add_u32 s%d, s%d, %d" % (sT0, sU2, qh * 80 * 1024))
    k("buffer_store_dwordx4 %s, v%d, %s, s%d offen" % (vr(120), vOutA, sr(OUT), sT0), "OUT")


k("s_waitcnt vmcnt(0)")
k("buffer_store_dwordx2 %s, v%d, %s, s%d offen offset:256 sc1" % (vr(vN, 2), vF, sr(WS), sFL), "FB")
stamp(8, 3)
poll("L_pollA", 128)
stamp(9, 3)
red_loads(0)
red_sum(0)
stamp(10, 3)
poll("L_pollB", 256)
stamp(14)
stamp(11, 3)
red_loads(1)
red_sum(1)
if OPT["stamps"]:
    k("s_waitcnt vmcnt(0)")
    stamp(15)
    stamp(12, 3)
    k("s_waitcnt lgkmcnt(0)")
    for n in range(2 * NST):
        k("v_mov_b32 v%d, s%d" % (24 + n, STAMP0 + n))
    k("s_mul_i32 s%d, s2, %d" % (sT0, NST * 8))
    k("s_add_u32 s%d, s%d, 0x%x" % (sT0, sT0, STAMP_OFF))
    k("v_mov_b32 v%d, 0x%x" % (TMP, OOB))
    k("v_cmp_eq_u32 vcc, %d, v0" % (64 * (OPT["stamps"] - 1)))
    k("v_cndmask_b32 v%d, v%d, 0, vcc" % (TMP, TMP))
    for n in range(NST // 2):
        k("buffer_store_dwordx4 %s, v%d, %s, s%d offen offset:%d" % (vr(24 + 4 * n), TMP, sr(WS), sT0, 16 * n))
k.label("L_end")
k("s_endpgm")

k.label("L_f1_slow")
k("buffer_store_dwordx2 %s, v%d, %s, s%d offen sc1" % (vr(vN, 2), vF, sr(WS), sFL))
k("s_branch L_f1_done")

k.label("L_poll1")
k("s_mov_b32 s%d, 0" % sT2)
k.label("L_poll1_loop")
k("buffer_load_dwordx2 %s, v%d, %s, s%d offen sc1" % (vr(vPD, 2), vPoll, sr(WS), sU0))
k("s_waitcnt vmcnt(0)")
k("v_cmp_ne_u64 vcc, %s, %s" % (vr(vN, 2), vr(vPD, 2)))
k("s_cbranch_vccz L_poll1_ok")
k("s_add_u32 s%d, s%d, 1" % (sT2, sT2))
k("s_cmp_lt_u32 s%d, %d" % (sT2, SPIN))
k("s_cbranch_scc1 L_poll1_loop")
k("s_branch L_poll1_ok")

k.label("L_nonce_slow")
k("s_mov_b32 s%d, 0" % sCNT)
k("v_mov_b32 v%d, 0" % TMP)
k.label("L_nonce_spin")
k("buffer_load_dwordx2 %s, v%d, %s, 0 offen sc1" % (vr(vN, 2), TMP, sr(DBG)))
k("s_waitcnt vmcnt(0)")
k("v_readfirstlane_b32 s%d, v%d" % (sN0, vN))
k("v_readfirstlane_b32 s%d, v%d" % (sN1, vN + 1))
k("s_and_b32 s%d, s%d, 1" % (sT0, sN0))
k("s_lshr_b32 s%d, s%d, 31" % (sT1, sN1))
k("s_and_b32 s%d, s%d, s%d" % (sT0, sT0, sT1))
k("s_cbranch_scc1 L_nonce_ok")
k("s_add_u32 s%d, s%d, 1" % (sCNT, sCNT))
k("s_cmp_lt_u32 s%d, %d" % (sCNT, SPIN))
k("s_cbranch_scc1 L_nonce_spin")
k("s_branch L_nonce_ok")

if OPT["fallback"]:
    k.label("L_fallback")
    k("s_cmp_lg_u32 s%d, 0" % sPASS)
    k("s_cbranch_scc1 L_nofb")
    k("s_mov_b32 s%d, 1" % sPASS)
    k("s_waitcnt vmcnt(0) lgkmcnt(0)")
    k("s_barrier")
    k("s_nop 7")
    MX = L0
    for t in range(5):
        k("v_mov_b32 v%d, 0xff800000" % (MX + t))
    k("s_lshl_b32 s%d, s%d, 11" % (sT0, sX))
    for n in range(4):
        k("v_subrev_u32 v%d, s%d, v%d" % (L0 + 8 + n, sT0, vKr[n]))
    k("v_mov_b32 v%d, s%d" % (vN, sN0))
    k("s_mov_b32 s%d, 0" % sCNT)
    k.label("L_fb_loop")
    k("s_add_u32 m0, s%d, %d" % (sWT, KS[0]))
    k("s_nop 0")
    for n in range(4):
        k("buffer_load_dwordx4 v%d, %s, s%d offen offset:%d lds" % (vKd, sr(K_), sCNT, n * 1024))
    k("s_waitcnt vmcnt(0)")
    k("s_barrier")
    k("s_mov_b32 s%d, 0" % sT1)
    k.label("L_fb_kt")
    for n in range(4):
        k("v_add_u32 v%d, s%d, v%d" % (L0 + 12 + n, sT1, L0 + 8 + n))
    for n in range(4):
        k("ds_read_b128 %s, v%d offset:%d" % (ar(aVFO + 4 * n), L0 + 12 + n, KS[0]))
    k("s_waitcnt lgkmcnt(0)")
    for half in range(2):
        for kk in range(2):
            kq = half * 2 + kk
            for t in range(5):
                d = vr(S(1, half, t))
                k(mfma(d, ar(aVFO + 4 * kq), Qf(kq, t), "0" if kk == 0 else d))
    for t in range(5):
        for n in range(4):
            k("v_add_f32 v%d, v%d, v%d" % (S(1, 0, t) + n, S(1, 0, t) + n, S(1, 1, t) + n))
    for t in range(5):
        k("v_max3_f32 v%d, v%d, v%d, v%d" % (MX + t, MX + t, S(1, 0, t), S(1, 0, t) + 1))
        k("v_max3_f32 v%d, v%d, v%d, v%d" % (MX + t, MX + t, S(1, 0, t) + 2, S(1, 0, t) + 3))
    k("s_add_u32 s%d, s%d, 1024" % (sT1, sT1))
    k("s_cmp_lt_u32 s%d, 4096" % sT1)
    k("s_cbranch_scc1 L_fb_kt")
    k("s_barrier")
    k("s_add_u32 s%d, s%d, 16384" % (sCNT, sCNT))
    k("s_cmp_lt_u32 s%d, 131072" % sCNT)
    k("s_cbranch_scc1 L_fb_loop")
    max_to_negm(lambda t: MX + t)
    run(tiles([("K", 0, KS[0]), ("K", 1, KS[1]), ("K", 2, KS[2]), ("V", 0, VS[0]), ("V", 1, VS[1]),
               ("W", 0, VS[3]), ("V", 2, VS[2])]))
    k("s_waitcnt vmcnt(0)")
    k("s_barrier")
    for kt in range(2):
        for kq in range(4):
            emit(k, rd_k(kt, kq, KS[0], "k"))
    k("s_waitcnt lgkmcnt(0)")
    k("s_branch L_attn")
if OPT["codepf"]:
    k(".fill 2048, 4, 0xbf800000")

out = (HDR + "; @launch grid=(256,1,1) block=(256,1,1) lds=163840\n"
       + '.amdgcn_target "amdgcn-amd-amdhsa--gfx950"\n' + k.text() + kernel_desc(KN, 512, 102, 256))
open(sys.argv[1], "w").write(out)
print("instructions:", sum(1 for i in k.ins if i.real), "pads:", getattr(k, "npad", 0), file=sys.stderr)
```

```python
import sys
from lib import NAME, HDR, STAMP_OFF, kernel_desc
from kb import KB, Sched, emit

OPT = dict(stamps=0, force_slow=0, fallback=1, rot=1, codepf=1, prof=0, cyc=0, flag_gap=40, poll_gap=58, chk_gap=72)
for a in sys.argv[2:]:
    kk, vv = a.split("=")
    OPT[kk] = int(vv)

KN = NAME + "_kernel"
k = KB()

KS = [0, 16384, 32768]
VBASE = 49152
VS = [49152, 65536, 81920, 98304]
PBASE = 114688
MISC = 155648
STG = 53248
STG_SZ = 36864
def stg_buf(s): return (s + 1) % 3
OX_OFF = 0
PX_OFF = 16 << 20
FL_OFF = 32 << 20
OOB = 0x40000000
SPIN = 400000

vL, vKd, vVd, vOd, vPw, vPr = 1, 2, 3, 4, 5, 6
vKr = [7, 8, 9, 10]
vVo = [11, 12, 13, 14]
vVp = [15, 16, 17, 18]
vWor = [19, 20]
vLin = 21
vN = 22
BANK0, QOWN, O0, NEGM, L0, TMP = 24, 84, 124, 204, 224, 244
aPPAR, aVFP, aONES, aQP, aWO, aKF, aVFO = 0, 20, 36, 40, 80, 208, 240
QACC = 124
vXd = [24, 25, 26, 27, 28]
vWd = [29, 30, 31, 32]
vXr = [[33, 34], [35, 36]]
vWr = [[37, 38], [39, 40]]
aXF = [80, 116, 152]
aWF = [100, 136, 172]

sW = 3
X, K_, V_, WQ, WO, OUT, DBG, WS = 20, 24, 28, 32, 36, 40, 44, 48
sI, sB, sC, sX, sQH, sSS, sT0, sT1, sT2, sWT, sWX, sWW = 52, 53, 54, 55, 56, 57, 58, 59, 60, 61, 62, 63
sPASS, sCNT, sFL, sXCC, sSC0, sSC1 = 64, 65, 66, 67, 68, 69
sN0, sN1 = 4, 5
sU0, sU1, sU2, sU3 = 6, 7, 8, 9
STAMP0 = 70
NST = 16


def vr(b, n=4): return "v[%d:%d]" % (b, b + n - 1)
def ar(b, n=4): return "a[%d:%d]" % (b, b + n - 1)
def sr(b, n=4): return "s[%d:%d]" % (b, b + n - 1)


def stamp_txt(i, prof=0):
    if OPT["stamps"] and (OPT["prof"] == prof or i == 0):
        return "%s s[%d:%d]" % ("s_memtime" if OPT["cyc"] else "s_memrealtime", STAMP0 + 2 * i, STAMP0 + 2 * i + 1)
    return None


def stamp(i, prof=0):
    t = stamp_txt(i, prof)
    if t:
        k(t)


def probe(i):
    if OPT.get("hold", -1) == i:
        k.label("L_hold")
        k("s_memrealtime s[98:99]")
        k("s_waitcnt lgkmcnt(0)")
        k("s_sub_u32 s98, s98, s%d" % sN0)
        k("s_cmp_lt_u32 s98, %d" % (OPT["holdus"] * 100))
        k("s_cbranch_scc1 L_hold")


def mfma(d, a, b, c):
    return "v_mfma_f32_16x16x32_bf16 %s, %s, %s, %s" % (d, a, b, c)


def srd(d, base, off_sreg, total):
    if off_sreg is None:
        k("s_mov_b32 s%d, s%d" % (d, base))
        k("s_and_b32 s%d, s%d, 0xffff" % (d + 1, base + 1))
        k("s_mov_b32 s%d, 0x%x" % (d + 2, total))
    else:
        k("s_add_u32 s%d, s%d, s%d" % (d, base, off_sreg))
        k("s_addc_u32 s%d, s%d, 0" % (d + 1, base + 1))
        k("s_and_b32 s%d, s%d, 0xffff" % (d + 1, d + 1))
        k("s_sub_u32 s%d, 0x%x, s%d" % (d + 2, total, off_sreg))
    k("s_mov_b32 s%d, 0x20000" % (d + 3))


def S(j, kt, t): return BANK0 + (20 * (j & 1) if kt == 0 else 40) + 4 * t
def Pown(j, t): return BANK0 + 20 * (j & 1) + 4 * t
def On(dt, t): return O0 + (dt * 5 + t) * 4
def Qf(kq, t): return vr(QOWN + (kq * 5 + t) * 4) if kq < 2 else ar(aQP + ((kq - 2) * 5 + t) * 4)
def Kf(kt, kq): return aKF + (kt * 4 + kq) * 4
def WoF(ksg, e): return aWO + (ksg * 2 + e) * 4


def dma_kv(which, j, slot):
    s, vd = (K_, vKd) if which == "K" else (V_, vVd)
    tag = "%s%d" % (which, j)
    r = [("s_add_u32 m0, s%d, %d" % (sWT, slot), "s"), ("s_mov_b32 s%d, %d" % (sT0, j * 16384), "s")]
    for n in range(4):
        r.append((("buffer_load_dwordx4 v%d, %s, s%d offen offset:%d nt lds" % (vd, sr(s), sT0, n * 1024), tag), "g"))
    return r


def dma_wo(u, slot):
    tag = "W%d" % u
    r = [("s_add_u32 m0, s%d, %d" % (sWT, slot), "s")]
    for n in range(4):
        r.append(("s_add_u32 s%d, s%d, %d" % (sT2, sU0 + (u >> 1), (u & 1) * 65536 + 3072 * n), "s"))
        r.append((("buffer_load_dwordx4 v%d, %s, s%d offen offset:%d lds" % (vOd, sr(WO), sT2, n * 1024), tag), "g"))
    return r


def dma_stage(s):
    tag = "S%d" % s
    buf = stg_buf(s) * STG_SZ
    r = [("s_lshl_b32 s%d, s%d, 7" % (sT0, sSS), "s"),
         ("s_add_u32 m0, s%d, %d" % (sWX, buf), "s"),
         ("s_lshl_b32 s%d, s%d, 19" % (sT1, sSS), "s")]
    for n in range(4):
        r.append((("buffer_load_dwordx4 v%d, %s, s%d offen offset:%d lds" % (vXd[n], sr(X), sT0, n * 1024), tag), "g"))
    r.append(("s_add_u32 m0, s%d, %d" % (sWX, buf + 4096), "s"))
    r.append(("s_add_u32 s%d, s%d, 1" % (sSS, sSS), "s"))
    r.append((("buffer_load_dwordx4 v%d, %s, s%d offen lds" % (vXd[4], sr(X), sT0), tag), "g"))
    r.append(("s_add_u32 m0, s%d, %d" % (sWW, buf), "s"))
    r.append(("s_and_b32 s%d, s%d, 7" % (sSS, sSS), "s"))
    for n in range(4):
        r.append((("buffer_load_dwordx4 v%d, %s, s%d offen offset:%d lds" % (vWd[n], sr(WQ), sT1, n * 1024), tag), "g"))
    return r


def run(lst):
    for f in lst:
        if isinstance(f, tuple) and len(f) == 2 and isinstance(f[1], str) and len(f[1]) == 1 and f[1] in "evdgws":
            f = f[0]
        emit(k, f)


def rd_k(kt, kq, slot, tag):
    return ("ds_read_b128 %s, v%d offset:%d" % (ar(Kf(kt, kq)), vKr[kq], slot + kt * 1024), tag)


def rd_v(own, dt, e2, slot, tag):
    off = slot - VBASE + e2 * 1024
    return ("ds_read_b64_tr_b16 %s, v%d offset:%d" % (ar((aVFO if own else aVFP) + dt * 4 + e2 * 2, 2),
                                                     (vVo if own else vVp)[dt], off), tag)


def rd_ppar(j, t, tag):
    return ("ds_read_b128 %s, v%d offset:%d" % (ar(aPPAR + 4 * t), vPr, (j & 1) * 5120 + t * 1024), tag)


def wr_pown(j, t, tag):
    return ("ds_write_b128 v%d, %s offset:%d" % (vPw, vr(Pown(j, t)), (j & 1) * 5120 + t * 1024), tag)


def rd_wo(u, slot, tag):
    r = []
    va, off = (vWor[0], slot) if slot < VBASE else (vWor[1], slot - VBASE)
    for pp in range(2):
        for e in range(2):
            for e2 in range(2):
                r.append(("ds_read_b64_tr_b16 %s, v%d offset:%d" % (
                    ar(WoF(2 * u + pp, e) + 2 * e2, 2), va, off + (32 * pp + 16 * e2) * 256 + 8 * e), tag))
    return r


def exp_(j, kt, t, r_):
    s = S(j, kt, t) + r_
    return "v_exp_f32 v%d, v%d" % (s, s)


def cvt_p(j, t, n):
    s = S(j, n >> 1, t) + (n & 1) * 2
    return "v_cvt_pk_bf16_f32 v%d, v%d, v%d" % (Pown(j, t) + n, s, s + 1)


k(".text")
k(".globl %s" % KN)
k(".p2align 8")
k(".type %s,@function" % KN)
k.label(KN)
k("s_cmp_ge_u32 s2, 256")
k("s_cbranch_scc1 L_end")
stamp(0)
k("s_load_dwordx8 s[4:11], s[0:1], 0")
k("s_load_dwordx8 s[12:19], s[0:1], 32")
k("s_memrealtime s[%d:%d]" % (sSC0, sSC1))
k("v_lshrrev_b32 v%d, 6, v0" % vN)
k("v_and_b32 v%d, 63, v0" % vL)
k("v_readfirstlane_b32 s%d, v%d" % (sW, vN))
k("s_and_b32 s%d, s2, 7" % sI)
k("s_lshr_b32 s%d, s2, 5" % sB)
k("s_bfe_u32 s%d, s2, 0x20003" % sC)
k("s_and_b32 s%d, s%d, 1" % (sX, sW))
if OPT["rot"]:
    k("s_lshl_b32 s%d, s%d, 1" % (sSS, sC))
    k("s_add_u32 s%d, s%d, s%d" % (sSS, sSS, sB))
    k("s_and_b32 s%d, s%d, 7" % (sSS, sSS))
else:
    k("s_mov_b32 s%d, 0" % sSS)
k("s_lshl_b32 s%d, s%d, 12" % (sWT, sW))
k("s_mul_i32 s%d, s%d, 5120" % (sWX, sW))
k("s_add_u32 s%d, s%d, %d" % (sWX, sWX, STG))
k("s_add_u32 s%d, s%d, %d" % (sWW, sWT, STG + 20480))
g_, i16, r_, cc = TMP, TMP + 1, TMP + 2, TMP + 3
t0, t1, t2 = TMP + 4, TMP + 5, TMP + 6
k("v_lshrrev_b32 v%d, 4, v%d" % (g_, vL))
k("v_and_b32 v%d, 15, v%d" % (i16, vL))
k("v_and_b32 v%d, 7, v%d" % (t0, vL))
k("v_xor_b32 v%d, v%d, v%d" % (t0, t0, g_))
k("s_lshl_b32 s%d, s%d, 2" % (sT0, sX))
k("v_xor_b32 v%d, s%d, v%d" % (t0, sT0, t0))
k("v_lshlrev_b32 v%d, 4, v%d" % (t0, t0))
k("v_lshrrev_b32 v%d, 3, v%d" % (t1, vL))
k("v_lshl_add_u32 v%d, v%d, 10, v%d" % (vXd[0], t1, t0))
k("v_xor_b32 v%d, 64, v%d" % (t0, vXd[0]))
k("v_add_u32 v%d, %d, v%d" % (vXd[1], 7168, t0))
k("v_add_u32 v%d, %d, v%d" % (vXd[2], 2 * 7168, vXd[0]))
k("v_add_u32 v%d, %d, v%d" % (vXd[3], 3 * 7168, t0))
k("v_add_u32 v%d, %d, v%d" % (vXd[4], 4 * 8192, vXd[0]))
k("v_lshlrev_b32 v%d, 2, v%d" % (t0, g_))
k("v_xor_b32 v%d, v%d, v%d" % (t0, t0, i16))
k("v_lshlrev_b32 v%d, 4, v%d" % (t0, t0))
k("v_lshl_add_u32 v%d, v%d, 13, v%d" % (vWd[0], g_, t0))
k("v_lshl_add_u32 v%d, v%d, 10, v%d" % (vOd, g_, t0))
for n in range(1, 4):
    k("v_add_u32 v%d, %d, v%d" % (vWd[n], n * (32768 - 1024), vWd[0]))
k("s_mul_i32 s%d, s%d, 163840" % (sT0, sB))
k("s_mul_i32 s%d, s%d, 40960" % (sT1, sW))
k("s_add_u32 s%d, s%d, s%d" % (sT0, sT0, sT1))
k("s_lshl_b32 s%d, s%d, 2" % (sT2, sI))
k("s_add_u32 s%d, s%d, s%d" % (sT2, sT2, sC))
k("s_lshl_b32 s%d, s%d, 8" % (sCNT, sT2))
k("s_lshl_b32 s%d, s%d, 17" % (sT1, sW))
k("s_add_u32 s%d, s%d, s%d" % (sCNT, sCNT, sT1))
k("s_waitcnt lgkmcnt(0)")
srd(X, 4, sT0, 8 * 160 * 512 * 2)
srd(WQ, 10, sCNT, 512 * 4096 * 2)
run(dma_stage(0))
if OPT["codepf"]:
    k("s_getpc_b64 s[%d:%d]" % (sT0, sT1))
    k("v_lshlrev_b32 v%d, 7, v0" % t1)
    k("global_load_dword v%d, v%d, s[%d:%d]" % (TMP + 7, t1, sT0, sT1), "CP")
k("s_lshl_b32 s%d, s%d, 5" % (sT0, sB))
k("s_add_u32 s%d, s%d, s%d" % (sT0, sT0, sT2))
k("s_lshl_b32 s%d, s%d, 17" % (sT0, sT0))
k("s_add_u32 s%d, s%d, s%d" % (sT2, sT0, sWT))
srd(K_, 6, sT2, 8 * 32 * 512 * 128 * 2)
srd(V_, 8, sT2, 8 * 32 * 512 * 128 * 2)
k("s_lshl_b32 s%d, s%d, 19" % (sT0, sI))
k("s_lshl_b32 s%d, s%d, 8" % (sT1, sC))
k("s_add_u32 s%d, s%d, s%d" % (sT0, sT0, sT1))
k("s_lshl_b32 s%d, s%d, 14" % (sT1, sW))
k("s_add_u32 s%d, s%d, s%d" % (sT0, sT0, sT1))
srd(WO, 12, sT0, 4096 * 512 * 2)
srd(OUT, 14, None, 8 * 160 * 512 * 2)
srd(DBG, 16, None, 256)
srd(WS, 18, None, 268435456)
k("s_or_b32 s%d, s%d, 1" % (sSC0, sSC0))
k("s_or_b32 s%d, s%d, 0x80000000" % (sSC1, sSC1))
k("v_mov_b32 v%d, s%d" % (vN, sSC0))
k("v_mov_b32 v%d, s%d" % (vN + 1, sSC1))
k("v_or_b32 v%d, s2, v0" % t1)
k("v_lshlrev_b32 v%d, 8, v%d" % (t1, t1))
k("buffer_store_dwordx2 %s, v%d, %s, 0 offen sc1" % (vr(vN, 2), t1, sr(DBG)), "NS")
k("s_getreg_b32 s%d, hwreg(HW_REG_XCC_ID, 0, 4)" % sXCC)
k("s_lshr_b32 s%d, s%d, 1" % (sQH, sW))
k("s_mov_b32 s%d, 0" % sPASS)
k("s_lshl_b32 s%d, s2, 9" % sFL)
k("s_add_u32 s%d, s%d, 0x%x" % (sFL, sFL, FL_OFF))
for n in range(4):
    k("s_xor_b32 s%d, s%d, %d" % (sU0 + n, sC, n))
    k("s_lshl_b32 s%d, s%d, 17" % (sU0 + n, sU0 + n))
k("v_bfe_u32 v%d, v%d, 2, 2" % (r_, vL))
k("v_and_b32 v%d, 3, v%d" % (cc, vL))
k("v_lshlrev_b32 v%d, 4, v%d" % (vLin, vL))
k("s_lshl_b32 s%d, s%d, 2" % (sT0, sW))
k("v_xor_b32 v%d, v%d, v%d" % (t0, i16, g_))
k("v_xor_b32 v%d, s%d, v%d" % (t1, sT0, t0))
k("v_lshlrev_b32 v%d, 4, v%d" % (t1, t1))
k("v_lshl_add_u32 v%d, v%d, 8, v%d" % (vKd, g_, t1))
k("s_lshl_b32 s%d, s%d, 3" % (sT0, sX))
k("v_lshlrev_b32 v%d, 1, v%d" % (t1, g_))
k("v_xor_b32 v%d, v%d, v%d" % (t1, t1, i16))
k("v_xor_b32 v%d, s%d, v%d" % (t1, sT0, t1))
k("v_lshlrev_b32 v%d, 4, v%d" % (t1, t1))
k("v_lshl_add_u32 v%d, v%d, 8, v%d" % (vVd, g_, t1))
k("v_lshrrev_b32 v%d, 1, v%d" % (t1, i16))
k("v_xor_b32 v%d, v%d, v%d" % (t1, t1, g_))
k("v_lshlrev_b32 v%d, 4, v%d" % (t1, t1))
k("v_lshl_add_u32 v%d, v%d, 7, v%d" % (t1, i16, t1))
k("s_mul_i32 s%d, s%d, 10240" % (sT0, sQH))
k("s_add_u32 s%d, s%d, %d" % (sT0, sT0, STG))
k("v_add_u32 v%d, s%d, v%d" % (vXr[0][0], sT0, t1))
k("v_xor_b32 v%d, 64, v%d" % (vXr[0][1], vXr[0][0]))
k("v_add_u32 v%d, %d, v%d" % (vXr[1][0], 2 * STG_SZ, vXr[0][0]))
k("v_add_u32 v%d, %d, v%d" % (vXr[1][1], 2 * STG_SZ, vXr[0][1]))
k("s_lshl_b32 s%d, s%d, 1" % (sT0, sX))
k("v_xor_b32 v%d, s%d, v%d" % (t1, sT0, r_))
k("v_lshl_add_u32 v%d, v%d, 2, v%d" % (t1, t1, cc))
k("v_lshlrev_b32 v%d, 4, v%d" % (t1, t1))
k("v_lshl_add_u32 v%d, v%d, 3, v%d" % (t2, g_, r_))
k("v_lshl_add_u32 v%d, v%d, 8, v%d" % (t1, t2, t1))
k("v_add_u32 v%d, %d, v%d" % (vWr[0][0], STG + 20480, t1))
k("v_xor_b32 v%d, 64, v%d" % (vWr[0][1], vWr[0][0]))
k("v_add_u32 v%d, %d, v%d" % (vWr[1][0], 2 * STG_SZ, vWr[0][0]))
k("v_add_u32 v%d, %d, v%d" % (vWr[1][1], 2 * STG_SZ, vWr[0][1]))
k("v_lshlrev_b32 v%d, 4, v%d" % (t1, t0))
k("s_lshl_b32 s%d, s%d, 7" % (sT0, sX))
k("v_xor_b32 v%d, s%d, v%d" % (t1, sT0, t1))
k("v_lshl_add_u32 v%d, v%d, 12, v%d" % (t1, r_, t1))
k("v_lshl_add_u32 v%d, v%d, 8, v%d" % (t1, cc, t1))
k("s_lshl_b32 s%d, s%d, 11" % (sT1, sX))
k("v_add_u32 v%d, s%d, v%d" % (vKr[0], sT1, t1))
for n in range(1, 4):
    k("v_xor_b32 v%d, %d, v%d" % (vKr[n], 64 * n, vKr[0]))
k("v_and_b32 v%d, 1, v%d" % (t1, g_))
k("v_lshlrev_b32 v%d, 3, v%d" % (t1, t1))
k("v_lshl_add_u32 v%d, v%d, 1, v%d" % (t1, r_, t1))
k("v_lshrrev_b32 v%d, 1, v%d" % (t2, cc))
k("v_xor_b32 v%d, v%d, v%d" % (t1, t1, t2))
k("s_lshl_b32 s%d, s%d, 3" % (sT0, sX))
k("v_xor_b32 v%d, s%d, v%d" % (t1, sT0, t1))
k("v_lshlrev_b32 v%d, 4, v%d" % (t1, t1))
k("v_and_b32 v%d, 1, v%d" % (t2, cc))
k("v_lshl_add_u32 v%d, v%d, 3, v%d" % (t1, t2, t1))
k("v_lshl_add_u32 v%d, v%d, 8, v%d" % (t1, r_, t1))
k("v_lshl_add_u32 v%d, v%d, 12, v%d" % (t1, g_, t1))
k("s_add_u32 s%d, s%d, %d" % (sT1, sT1, VBASE))
k("v_add_u32 v%d, s%d, v%d" % (vVo[0], sT1, t1))
for n in range(1, 4):
    k("v_xor_b32 v%d, %d, v%d" % (vVo[n], 32 * n, vVo[0]))
for n in range(4):
    k("v_xor_b32 v%d, 2048, v%d" % (vVp[n], vVo[n]))
k("v_xor_b32 v%d, s%d, v%d" % (t1, sW, r_))
k("v_lshl_add_u32 v%d, v%d, 2, v%d" % (t1, t1, cc))
k("v_lshlrev_b32 v%d, 4, v%d" % (t1, t1))
k("v_lshl_add_u32 v%d, v%d, 2, v%d" % (t2, g_, r_))
k("v_lshl_add_u32 v%d, v%d, 8, v%d" % (vWor[0], t2, t1))
k("v_add_u32 v%d, %d, v%d" % (vWor[1], VBASE, vWor[0]))
k("s_mul_i32 s%d, s%d, 10240" % (sT0, sW))
k("s_add_u32 s%d, s%d, %d" % (sT0, sT0, PBASE))
k("v_add_u32 v%d, s%d, v%d" % (vPr, sT0, vLin))
k("s_xor_b32 s%d, s%d, 1" % (sT0, sW))
k("s_mul_i32 s%d, s%d, 10240" % (sT0, sT0))
k("s_add_u32 s%d, s%d, %d" % (sT0, sT0, PBASE))
k("v_add_u32 v%d, s%d, v%d" % (vPw, sT0, vLin))
k("v_mov_b32 v%d, 0x3f803f80" % t1)
for n in range(4):
    k("v_accvgpr_write_b32 a%d, v%d" % (aONES + n, t1))
k("s_mov_b32 s%d, 0x%x" % (sSC0, 0x3e0293ee))
k("s_mov_b32 s%d, s%d" % (sSC1, sSC0))
run(dma_stage(1))
stamp(1)

QP_EXTRA = {0: [("K", 0, KS[0])], 2: [("K", 1, KS[1])], 4: [("K", 2, KS[2])],
            6: [("V", 0, VS[0]), ("V", 1, VS[1])], 7: [("W", 0, VS[3]), ("V", 2, VS[2])]}


if OPT.get("latek"):
    QP_EXTRA = {5: [("K", 0, KS[0])], 6: [("K", 1, KS[1]), ("K", 2, KS[2]), ("V", 0, VS[0])],
                7: [("V", 1, VS[1]), ("W", 0, VS[3]), ("V", 2, VS[2])]}


def tiles(lst):
    r = []
    for (wh, n, slot) in lst:
        r += dma_wo(n, slot) if wh == "W" else dma_kv(wh, n, slot)
    return r


def qp_reads(s, ks, st):
    b = stg_buf(s)
    win, off = (1, 0) if b == 2 else (0, b * STG_SZ)
    r = []
    for p in range(2):
        for e in range(2):
            for e2 in range(2):
                r.append(("ds_read_b64_tr_b16 %s, v%d offset:%d" % (
                    ar(aWF[st] + (p * 2 + e) * 4 + 2 * e2, 2), vWr[win][p], off + ks * 8192 + e2 * 1024 + 8 * e),
                    "f%d_%d" % (s, ks)))
    xs = [("ds_read_b128 %s, v%d offset:%d" % (ar(aXF[st] + t * 4), vXr[win][ks], off + t * 2048), "f%d_%d" % (s, ks))
          for t in range(5)]
    return r[:2] + xs + r[2:]


def qp_mfma(st, tl, t, first=False):
    d = vr(QACC + (tl * 5 + t) * 4)
    return mfma(d, ar(aWF[st] + tl * 4), ar(aXF[st] + t * 4), "0" if first else d)


def qp_group(st, first=False):
    return [qp_mfma(st, tl, t, first) for tl in range(4) for t in range(5)]


def qfin(p, t, packed):
    f = QOWN + (p * 5 + t) * 4
    r = []
    for e in range(2):
        d = QACC + ((p * 2 + e) * 5 + t) * 4
        if packed:
            r.append(("v_pk_mul_f32 %s, %s, s[%d:%d]" % (vr(d, 2), vr(d, 2), sSC0, sSC1), "v"))
            r.append(("v_pk_mul_f32 %s, %s, s[%d:%d]" % (vr(d + 2, 2), vr(d + 2, 2), sSC0, sSC1), "v"))
        else:
            for n in range(4):
                r.append(("v_mul_f32 v%d, s%d, v%d" % (d + n, sSC0, d + n), "v"))
        r.append(("v_cvt_pk_bf16_f32 v%d, v%d, v%d" % (f + 2 * e, d, d + 1), "v"))
        r.append(("v_cvt_pk_bf16_f32 v%d, v%d, v%d" % (f + 2 * e + 1, d + 2, d + 3), "v"))
    r.append((("ds_write_b128 v%d, %s offset:%d" % (vPr, vr(f), (p * 5 + t) * 1024), "qw"), "w"))
    return r


for s in range(8):
    k.wait(vm="S%d" % s, force_ds0=True)
    k("s_barrier")
    if s == 0:
        stamp(2)
    stamp(1 + s, 2)
    dma = (dma_stage(s + 2) if s + 2 < 8 else []) + tiles(QP_EXTRA.get(s, []))
    if s == 7:
        dma = [("v_mov_b32 v%d, 0" % TMP, "v"),
               (("buffer_load_dwordx2 %s, v%d, %s, 0 offen sc1" % (vr(vN, 2), TMP, sr(DBG)), "NL"), "g")] + dma
    if s == 0:
        run(qp_reads(0, 0, 0))
        sc = Sched(k, qp_group(0, True))
        sc.need(0, ds="f0_0")
        for n, rd in enumerate(qp_reads(0, 1, 1)):
            sc.place(rd, "d", n)
        sc.chain(dma, 0, step=1)
        sc.emit()
    elif s < 7:
        sc = Sched(k, qp_group(1) + qp_group(0))
        for n, rd in enumerate(qp_reads(s, 0, 0)):
            sc.place(rd, "d", n)
        sc.need(20, ds="f%d_0" % s)
        for n, rd in enumerate(qp_reads(s, 1, 1)):
            sc.place(rd, "d", 20 + n)
        sc.chain(dma, 0, step=OPT.get("qstep", 3))
        sc.emit()
    else:
        ms = qp_group(1)
        order = [(p, t) for p in range(2) for t in range(5)]
        for (p, t) in order:
            ms += [qp_mfma(0, 2 * p, t), qp_mfma(0, 2 * p + 1, t), qp_mfma(2, 2 * p, t), qp_mfma(2, 2 * p + 1, t)]
        sc = Sched(k, ms)
        rds = qp_reads(7, 0, 0) + qp_reads(7, 1, 2)
        for n, rd in enumerate(rds):
            sc.place(rd, "d", (n * 2) // 3)
        sc.need(20, ds=("f7_0", "f7_1"), vm="K0", barrier=True, ds0=True)
        sc.chain(dma, 0, step=3)
        pos = 28
        nin = 4
        for (p, t) in order[:nin]:
            pos = sc.chain(qfin(p, t, False), pos) + 1
        sc.emit()
        for (p, t) in order[nin:]:
            run(qfin(p, t, True))
stamp(3)
stamp(9, 2)
k("s_lshl_b32 s%d, s%d, 11" % (sT0, sX))
for n in range(4):
    k("v_subrev_u32 v%d, s%d, v%d" % (TMP + n, sT0, vKr[n]))
for n in range(4):
    k("ds_read_b128 %s, v%d offset:%d" % (ar(aVFO + 4 * n), TMP + n, KS[0]), "mk")
k.wait(vm=("K1",), force_ds0=True)
k("s_barrier")
stamp(10, 2)
qr = [("ds_read_b128 %s, v%d offset:%d" % (Qf(2 + p, t), vPw, (p * 5 + t) * 1024), "qr") for p in range(2) for t in range(5)]
run(qr[:4])
ms = []
for half in range(2):
    for kk in range(2):
        kq = half * 2 + kk
        for t in range(5):
            d = vr(S(1, half, t))
            ms.append(mfma(d, ar(aVFO + 4 * kq), Qf(kq, t), "0" if kk == 0 else d))
sc = Sched(k, ms)
for n, rd in enumerate(qr[4:]):
    sc.place(rd, "d", n)
sc.need(10, ds="qr")
for n, rd in enumerate([rd_k(kt, kq, KS[0], "k") for kt in range(2) for kq in range(4)]):
    sc.place(rd, "d", 10 + n)
sc.emit()


def max_to_negm(src):
    for t in range(5):
        k("v_mov_b32 v%d, v%d" % (TMP + 5 + t, src(t)))
    for t in range(5):
        k("v_permlane16_swap_b32 v%d, v%d" % (src(t), TMP + 5 + t))
    for t in range(5):
        k("v_max_f32 v%d, v%d, v%d" % (src(t), src(t), TMP + 5 + t))
    for t in range(5):
        k("v_mov_b32 v%d, v%d" % (TMP + 5 + t, src(t)))
    for t in range(5):
        k("v_permlane32_swap_b32 v%d, v%d" % (src(t), TMP + 5 + t))
    for t in range(5):
        k("v_max_f32 v%d, v%d, v%d" % (src(t), src(t), TMP + 5 + t))
    for t in range(5):
        for n in range(4):
            k("v_sub_f32 v%d, 0, v%d" % (NEGM + 4 * t + n, src(t)))


for t in range(5):
    for n in (0, 2):
        k("v_pk_add_f32 %s, %s, %s" % (vr(S(1, 0, t) + n, 2), vr(S(1, 0, t) + n, 2), vr(S(1, 1, t) + n, 2)))
for t in range(5):
    k("v_max3_f32 v%d, v%d, v%d, v%d" % (TMP + t, S(1, 0, t), S(1, 0, t) + 1, S(1, 0, t) + 2))
for t in range(5):
    k("v_max_f32 v%d, v%d, v%d" % (TMP + t, TMP + t, S(1, 0, t) + 3))
max_to_negm(lambda t: TMP + t)
stamp(11, 2)

k.label("L_attn")


def qk_mfmas(j):
    ms = []
    for t in range(5):
        for kt in range(2):
            for kq in range(4):
                d = vr(S(j, kt, t))
                ms.append(mfma(d, ar(Kf(kt, kq)), Qf(kq, t), vr(NEGM + 4 * t) if kq == 0 else d))
    return ms


def softmax_items(j, t):
    return ([(exp_(j, 0, t, r), "e") for r in range(4)] + [(cvt_p(j, t, 0), "v"), (cvt_p(j, t, 1), "v")]
            + [(exp_(j, 1, t, r), "e") for r in range(4)] + [(cvt_p(j, t, 2), "v"), (cvt_p(j, t, 3), "v")]
            + [(wr_pown(j, t, "pw"), "w")])


sc = Sched(k, qk_mfmas(0))
sc.need(0, ds="k")
pos = 8
for t in range(3):
    pos = sc.chain(softmax_items(0, t), pos) + 1
sc.emit()
run([rd_k(kt, kq, KS[1], "k") for kt in range(2) for kq in range(4)])
for t in range(3, 5):
    run(softmax_items(0, t))
stamp(4)
stamp(12, 2)

ISSUE = {
    0: [("K", 3, KS[0])],
    1: [("W", 1, VS[3]), ("K", 4, KS[1]), ("V", 3, VS[0])],
    2: [("K", 5, KS[2]), ("V", 4, VS[1])],
    3: [("W", 2, VS[3]), ("K", 6, KS[0]), ("V", 5, VS[2])],
    4: [("K", 7, KS[1]), ("V", 6, VS[0])],
    5: [("W", 3, VS[3]), ("W", 4, KS[2]), ("V", 7, VS[1])],
    6: [("W", 5, KS[0]), ("W", 6, VS[2])],
    7: [("W", 7, KS[1])],
}
WREAD = {0: [(0, VS[3])], 2: [(1, VS[3])], 4: [(2, VS[3])]}
WLATE = [(3, VS[3]), (4, KS[2]), (5, KS[0]), (6, VS[2]), (7, KS[1])]


def pv(j, own, dt, t, first=False):
    d = vr(On(dt, t))
    a = ar((aVFO if own else aVFP) + 4 * dt)
    b = vr(Pown(j, t)) if own else ar(aPPAR + 4 * t)
    return mfma(d, a, b, "0" if first else d)


def lsum(j, t, first=False):
    d = vr(L0 + 4 * t)
    return mfma(d, ar(aONES), vr(Pown(j, t)), "0" if first else d)


for j in range(7):
    need = ["K%d" % (j + 1), "V%d" % j] + ["W%d" % u for (u, _) in WREAD.get(j, [])]
    if j == 0:
        need.append("NL")
    if j in (1, 2, 3):
        stamp({1: 1, 2: 6, 3: 11}[j], 1)
    k.wait(vm=need, force_ds0=True)
    k("s_barrier")
    if j in (0, 3, 6):
        stamp({0: 5, 3: 6, 6: 7}[j])
    if j in (1, 2):
        stamp(2 + 5 * (j - 1), 1)
    kslot = KS[(j + 1) % 3]
    vslot = VS[j % 3]
    nA = 10 if j > 0 else 0
    ms = [pv(j - 1, False, dt, t) for dt in (2, 3) for t in range(5)] if j > 0 else []
    ms += qk_mfmas(j + 1)
    for t in range(5):
        ms += [pv(j, True, dt, t, first=(j == 0)) for dt in range(4)] + [lsum(j, t, first=(j == 0))]
    ms += [pv(j, False, dt, t) for dt in (0, 1) for t in range(5)]
    sc = Sched(k, ms)
    if j in (1, 2):
        for (gp, si) in ((9, 3), (49, 4), (74, 5)):
            t_ = stamp_txt(si + 5 * (j - 1), 1)
            if t_:
                sc.put(gp, t_, "s")
    if j == 0:
        k("v_readfirstlane_b32 s%d, v%d" % (sN0, vN))
        k("v_readfirstlane_b32 s%d, v%d" % (sN1, vN + 1))
        k("s_and_b32 s%d, s%d, 1" % (sT0, sN0))
        k("s_lshr_b32 s%d, s%d, 31" % (sT1, sN1))
        k("s_and_b32 s%d, s%d, s%d" % (sT0, sT0, sT1))
        k("s_cbranch_scc0 L_nonce_slow")
        k.label("L_nonce_ok")
        probe(1)
    else:
        kreads = [rd_k(kt, kq, kslot, "k%d" % kt) for kt in range(2) for kq in range(4)]
        run(kreads[:2])
        sc.put(0, kreads[2], "d")
        sc.put(0, kreads[3], "d")
        for n in range(4):
            sc.put(1 + n, kreads[4 + n], "d")
        sc.need(nA, ds="k0")
        sc.need(nA + 4, ds="k1")
    p0 = nA + 7
    slots = []
    for t in range(5):
        it = softmax_items(j + 1, t)
        for n, (x, kind) in enumerate(it):
            sc.put(p0 + 13 * t + n, x, kind)
            if kind == "v":
                slots.append(p0 + 13 * t + n)
    vo = [rd_v(True, dt, e2, vslot, "vo") for dt in range(4) for e2 in range(2)]
    vp = [rd_v(False, dt, e2, vslot, "vp") for dt in range(4) for e2 in range(2)]
    pr = [rd_ppar(j, t, "pr") for t in range(5)]
    wr = []
    for (u, slot) in WREAD.get(j, []):
        wr += rd_wo(u, slot, "wo")
    dma = tiles(ISSUE[j])
    if j == 1:
        dma = [("s_add_u32 s%d, s%d, s%d" % (sT1, sN0, sXCC), "s"),
               ("v_mov_b32 v%d, s%d" % (vN, sT1), "v"),
               ("v_mov_b32 v%d, s%d" % (vN + 1, sN1), "v"),
               ("v_mov_b32 v%d, 0" % TMP, "v"),
               (("buffer_store_dwordx2 %s, v%d, %s, s%d offen offset:384 sc1" % (vr(vN, 2), TMP, sr(WS), sFL), "RS"), "g")] + dma
    if j == 5:
        dma = [("v_and_b32 v%d, 3, v%d" % (TMP, vL), "v"),
               ("v_lshlrev_b32 v%d, 3, v%d" % (TMP, TMP), "v"),
               ("v_xor_b32 v%d, s2, v%d" % (TMP, TMP), "v"),
               ("v_lshlrev_b32 v%d, 9, v%d" % (TMP, TMP), "v"),
               ("s_mov_b32 s%d, 0x%x" % (sT1, FL_OFF), "s"),
               (("buffer_load_dwordx2 %s, v%d, %s, s%d offen offset:384 sc1" % (vr(TMP + 10, 2), TMP, sr(WS), sT1), "RL"), "g")] + dma
    sc.chain(dma, 1, step=4 if len(ISSUE[j]) < 3 else 3)
    for rd in vo + vp[:4] + wr:
        sc.place(rd, "d", 1, nA + 38)
    for rd in vp[4:] + pr:
        sc.place(rd, "d", nA, nA + 60)
    sc.need(nA + 40, ds="vo")
    sc.need(nA + 65, ds=("vp", "pr"))
    if OPT.get("verbose"):
        print("iter", j, "model cycles", sc.cost(), file=sys.stderr)
    sc.emit()

sc = Sched(k, [lsum(7, t) for t in range(5)])
sc.chain([("s_mul_i32 s%d, s%d, 1280" % (sT0, sW), "s"),
          ("s_add_u32 s%d, s%d, %d" % (sT0, sT0, MISC), "s"),
          ("s_xor_b32 s%d, s%d, 1" % (sT1, sW), "s"),
          ("s_mul_i32 s%d, s%d, 1280" % (sT1, sT1), "s"),
          ("s_add_u32 s%d, s%d, %d" % (sT1, sT1, MISC), "s")], 0)
sc.emit()
k("v_lshl_add_u32 v%d, v%d, 2, s%d" % (TMP, vL, sT0))
k("v_lshl_add_u32 v%d, v%d, 2, s%d" % (TMP + 1, vL, sT1))
k("s_lshl_b32 s%d, s%d, 2" % (sT1, sW))
k("s_add_u32 s%d, s%d, %d" % (sT1, sT1, MISC + 5120))
k("v_add_u32 v%d, s%d, v%d" % (TMP + 2, sT1, vLin))
k("v_add_u32 v%d, %d, v%d" % (TMP + 3, MISC + 5120, vLin))
k("s_mul_i32 s%d, s2, 40960" % sT0)
k("s_mul_i32 s%d, s%d, 10240" % (sT1, sW))
k("s_add_u32 s%d, s%d, s%d" % (sSS, sT0, sT1))
k("v_max3_f32 v%d, v%d, v%d, v%d" % (TMP + 4, L0, L0 + 4, L0 + 8))
k("v_max3_f32 v%d, v%d, v%d, v%d" % (TMP + 4, TMP + 4, L0 + 12, L0 + 16))
for t in range(5):
    k("ds_write_b32 v%d, v%d offset:%d" % (TMP, L0 + 4 * t, t * 256), "lw")
k("ds_write_b32 v%d, v%d" % (TMP + 2, TMP + 4), "lw")

k.wait(vm=["V7", "RL"], force_ds0=True)
k("s_barrier")
stamp(8)
stamp(1, 3)
probe(2)
vslot = VS[7 % 3]
vo = [rd_v(True, dt, e2, vslot, "vo") for dt in range(4) for e2 in range(2)]
vp = [rd_v(False, dt, e2, vslot, "vp") for dt in range(4) for e2 in range(2)]
pr = [rd_ppar(7, t, "pr%d" % t) for t in range(5)]
lr = [("ds_read_b128 %s, v%d" % (vr(TMP + 4), TMP + 3), "lm")]
lr += [("ds_read_b32 v%d, v%d offset:%d" % (L0 + 4 * t + 1, TMP + 1, t * 256), "lr") for t in range(5)]
ms = [pv(6, False, dt, t) for dt in (2, 3) for t in range(5)]
ms += [pv(7, True, dt, t) for t in range(5) for dt in range(4)]
sc = Sched(k, ms)
run(vo[:2])
for rd in vo[2:] + lr + vp[:4]:
    sc.place(rd, "d", 0)
sc.need(10, ds="vo")
for rd in vp[4:] + pr:
    sc.place(rd, "d", 10)
sc.chain(tiles(ISSUE[7]), 8, step=4)
sc.need(16, ds=("lm", "lr"))
chk = [("v_max3_f32 v%d, v%d, v%d, v%d" % (TMP + 4, TMP + 4, TMP + 5, TMP + 6), "v"),
       ("v_max_f32 v%d, v%d, v%d" % (TMP + 4, TMP + 4, TMP + 7), "v"),
       ("v_cmp_lt_f32 vcc, 0x4e800000, v%d" % (TMP + 4), "v")]
chk += [("v_add_f32 v%d, v%d, v%d" % (L0 + 4 * t, L0 + 4 * t, L0 + 4 * t + 1), "v") for t in range(5)]
chk += [("v_rcp_f32 v%d, v%d" % (L0 + 4 * t, L0 + 4 * t), "e") for t in range(5)]
chk += [("v_cmp_ne_u64 s[%d:%d], %s, %s" % (sT0, sT1, vr(vN, 2), vr(TMP + 10, 2)), "v")]
sc.chain(chk, 16)
sc.emit()
if OPT["fallback"]:
    k("s_cbranch_vccnz L_fallback")
k.label("L_nofb")
k("s_or_b32 s%d, s%d, s%d" % (sCNT, sT0, sT1))
if OPT["force_slow"]:
    k("s_mov_b32 s%d, 1" % sCNT)
k("s_cmp_eq_u32 s%d, 0" % sCNT)
k("s_cbranch_scc0 L_pub_slow")

OF = BANK0


def fin(t, packed, fl):
    r = []
    for pp in range(2):
        f = OF + (pp * 5 + t) * 4
        for e in range(2):
            d = On(2 * pp + e, t)
            if packed:
                r.append(("v_pk_mul_f32 %s, %s, %s op_sel_hi:[1,0]" % (vr(d, 2), vr(d, 2), vr(L0 + 4 * t, 2)), "v"))
                r.append(("v_pk_mul_f32 %s, %s, %s op_sel_hi:[1,0]" % (vr(d + 2, 2), vr(d + 2, 2), vr(L0 + 4 * t, 2)), "v"))
            else:
                for n in range(4):
                    r.append(("v_mul_f32 v%d, v%d, v%d" % (d + n, d + n, L0 + 4 * t), "v"))
            r.append(("v_cvt_pk_bf16_f32 v%d, v%d, v%d" % (f + 2 * e, d, d + 1), "v"))
            r.append(("v_cvt_pk_bf16_f32 v%d, v%d, v%d" % (f + 2 * e + 1, d + 2, d + 3), "v"))
        n = pp * 5 + t
        r.append(("s_add_u32 s%d, s%d, %d" % (sT0, sSS, OX_OFF + n * 1024), "s"))
        r.append((("buffer_store_dwordx4 %s, v%d, %s, s%d offen%s" % (vr(f), vLin, sr(WS), sT0, fl), "OS"), "w"))
    return r


def publish(fl):
    ms = [pv(7, False, dt, t) for t in range(5) for dt in range(4)]
    sc = Sched(k, ms)
    for t in range(5):
        sc.need(4 * t, ds=("vp", "pr%d" % t))
    sc.chain(fin(0, False, fl), 7)
    sc.emit()
    for t in range(1, 5):
        run(fin(t, True, fl))


sv = (list(k.vmq), list(k.dsq))
publish("")
k("s_branch L_pub_done")
k.label("L_pub_slow")
k.vmq, k.dsq = list(sv[0]), list(sv[1])
k("s_nop 7")
publish(" sc1")
k.label("L_pub_done")
stamp(9)
stamp(2, 3)
for n in range(10):
    k("ds_write_b128 v%d, %s offset:%d" % (vPr, vr(OF + 4 * n), n * 1024), "ow")
vO = [vLin, vKr[0], vKr[1]]
k("v_add_u32 v%d, 0x10000, v%d" % (vO[1], vLin))
k("v_add_u32 v%d, 0x20000, v%d" % (vO[2], vLin))
k.wait(vm=["W3", "W4", "W5", "W6", "W7"], force_ds0=True)
k("s_barrier")
stamp(3, 3)

ACC = O0
def Acc(e, qt): return ACC + (e * 10 + qt) * 4
aOB = 0


def chunk_addr(u, qh, f):
    if u == 0:
        return PBASE + (qh * 20 + f) * 1024
    lin = (qh * 3 + (u - 1)) * 20 + f
    return lin * 1024 if lin < 112 else MISC + (lin - 112) * 1024


def rd_o(u, qh, f, tag):
    addr = chunk_addr(u, qh, f)
    return ("ds_read_b128 %s, v%d offset:%d" % (ar(aOB + 4 * f), vO[addr >> 16], addr & 0xffff), tag)


def chunk_ms(u, qh):
    ms = []
    for p in range(4):
        for t in range(5):
            for e in range(2):
                d = vr(Acc(e, qh * 5 + t))
                ms.append(mfma(d, ar(WoF(4 * u + p, e)), ar(aOB + (p * 5 + t) * 4), "0" if (u == 0 and p == 0) else d))
    return ms


def dma_chunk(ci):
    qh, u = ci // 3, ci % 3 + 1
    tag = "C%d" % ci
    r = [("s_add_u32 s%d, s%d, %d" % (sT0, sU0 + u, OX_OFF + qh * 20480), "s")]
    if ci < 5:
        r.append(("s_add_u32 m0, s%d, %d" % (sWX, ci * 20480), "s"))
        r.append(("s_add_u32 s%d, s%d, 4096" % (sT1, sT0), "s"))
        for n in range(4):
            r.append((("buffer_load_dwordx4 v%d, %s, s%d offen offset:%d sc1 lds" % (vLin, sr(WS), sT0, n * 1024), tag), "g"))
        r.append(("s_add_u32 m0, s%d, %d" % (sWX, ci * 20480 + 4096), "s"))
        r.append(("s_nop 0", "s"))
        r.append((("buffer_load_dwordx4 v%d, %s, s%d offen sc1 lds" % (vLin, sr(WS), sT1), tag), "g"))
    else:
        for n in range(5):
            r.append(("s_add_u32 s%d, s%d, %d" % (sT1, sWX, (100 + n) * 1024), "s"))
            r.append(("s_cmp_ge_u32 s%d, %d" % (sT1, PBASE), "s"))
            r.append(("s_cselect_b32 s%d, %d, 0" % (sT2, MISC - PBASE), "s"))
            r.append(("s_add_u32 m0, s%d, s%d" % (sT1, sT2), "s"))
            r.append(("s_add_u32 s%d, s%d, %d" % (sT2, sT0, n * 1024), "s"))
            r.append((("buffer_load_dwordx4 v%d, %s, s%d offen sc1 lds" % (vLin, sr(WS), sT2), tag), "g"))
    return r


PF = BANK0


def part_out(qh):
    r = []
    for t in range(5):
        qt = qh * 5 + t
        f = PF + qt * 4
        for e in range(2):
            d = Acc(e, qt)
            r.append(("v_cvt_pk_bf16_f32 v%d, v%d, v%d" % (f + 2 * e, d, d + 1), "v"))
            r.append(("v_cvt_pk_bf16_f32 v%d, v%d, v%d" % (f + 2 * e + 1, d + 2, d + 3), "v"))
        r.append(("s_add_u32 s%d, s%d, %d" % (sT0, sSS, PX_OFF + qh * 20480 + t * 1024), "s"))
        r.append((("buffer_store_dwordx4 %s, v%d, %s, s%d offen sc1" % (vr(f), vLin, sr(WS), sT0), "P%d" % qh), "w"))
    return r


vF = TMP
vPoll = TMP + 1
vP2 = TMP + 2
vPD = TMP + 4

ms = chunk_ms(0, 0) + chunk_ms(0, 1)
G1 = OPT["chk_gap"]
sc = Sched(k, ms[:G1])
run([rd_o(0, 0, f, "o0_%d" % (f // 5)) for f in range(5)])
for f in range(5, 20):
    sc.place(rd_o(0, 0, f, "o0_%d" % (f // 5)), "d", f - 5)
for p in range(4):
    sc.need(10 * p, ds="o0_%d" % p)
for f in range(20):
    sc.place(rd_o(0, 1, f, "o1_%d" % (f // 5)), "d", 22 + 2 * f if f >= 5 else 22 + f)
for p in range(4):
    if 40 + 10 * p < G1:
        sc.need(40 + 10 * p, ds="o1_%d" % p)
wl = []
for (u, slot) in WLATE:
    wl += rd_wo(u, slot, "wo")
for rd in wl:
    sc.place(rd, "d", 0)
setup = [("s_lshl_b32 s%d, s%d, 3" % (sT0, sW), "s"),
         ("s_mul_i32 s%d, s%d, 5120" % (sWX, sW), "s")]
for u in (1, 2, 3):
    setup += [("s_xor_b32 s%d, s2, %d" % (sU0 + u, u << 3), "s"),
              ("s_mul_i32 s%d, s%d, 40960" % (sU0 + u, sU0 + u), "s"),
              ("s_add_u32 s%d, s%d, s%d" % (sU0 + u, sU0 + u, sWX), "s")]
setup += [("s_mul_i32 s%d, s2, 40960" % sSS, "s"),
          ("s_add_u32 s%d, s%d, s%d" % (sSS, sSS, sWX), "s"),
          ("s_mov_b32 s%d, 0x%x" % (sU0, FL_OFF), "s"),
          ("v_mov_b32 v%d, s%d" % (vF, sT0), "v"),
          ("v_mov_b32 v%d, s%d" % (vN, sN0), "v"),
          ("v_bfe_u32 v%d, v%d, 2, 2" % (vPoll, vL), "v"),
          ("v_lshlrev_b32 v%d, 3, v%d" % (vPoll, vPoll), "v"),
          ("v_xor_b32 v%d, s2, v%d" % (vPoll, vPoll), "v"),
          ("v_lshlrev_b32 v%d, 9, v%d" % (vPoll, vPoll), "v"),
          ("v_and_b32 v%d, 3, v%d" % (vPD, vL), "v"),
          ("v_lshl_add_u32 v%d, v%d, 3, v%d" % (vPoll, vPD, vPoll), "v")]
endset = sc.chain(setup, 0)
FG = max(OPT["flag_gap"], endset + 1)


def flag1():
    k("s_waitcnt vmcnt(0)")
    k("s_cmp_eq_u32 s%d, 0" % sCNT)
    k("s_cbranch_scc0 L_f1_slow")
    k("buffer_store_dwordx2 %s, v%d, %s, s%d offen" % (vr(vN, 2), vF, sr(WS), sFL), "F1")
    k.label("L_f1_done")
    stamp(10)
    stamp(4, 3)


sc.put(FG, flag1, "g")
sc.need(OPT["poll_gap"], ds="wo", barrier=True)
sc.put(OPT["poll_gap"], ("buffer_load_dwordx2 %s, v%d, %s, s%d offen sc1" % (vr(vPD, 2), vPoll, sr(WS), sU0), "PL"), "g")
sc.emit()
k.wait(vm="PL")
k("v_cmp_ne_u64 vcc, %s, %s" % (vr(vN, 2), vr(vPD, 2)))
k("s_cbranch_vccnz L_poll1")
k.label("L_poll1_ok")
stamp(11)
stamp(5, 3)
rest = ms[G1:]
nr = len(rest)
ms2 = list(rest)
for ci in range(6):
    ms2 += chunk_ms(ci % 3 + 1, ci // 3)
sc = Sched(k, ms2)
for p in range(4):
    if 40 + 10 * p >= G1:
        sc.need(40 + 10 * p - G1, ds="o1_%d" % p)
run(dma_chunk(0))
sc.chain(dma_chunk(1), 0, step=1, hi=nr - 1)
for ci in range(6):
    base = nr + 40 * ci
    u, qh = ci % 3 + 1, ci // 3
    if ci == 0:
        def first_chunk():
            k.wait(vm="C0")
            k("s_barrier")
            stamp(12)
            stamp(6, 3)
            run([rd_o(1, 0, f, "c0_%d" % (f // 5)) for f in range(10)])
        sc.put(nr - 1, first_chunk, "z")
        for f in range(10, 20):
            sc.place(rd_o(u, qh, f, "c0_%d" % (f // 5)), "d", base + f - 10)
    else:
        sc.need(base - 18, vm="C%d" % ci, barrier=True)
        for f in range(20):
            sc.place(rd_o(u, qh, f, "c%d_%d" % (ci, f // 5)), "d", base - 18 + (f if f < 5 else 2 * f))
    for p in range(4):
        sc.need(base + 10 * p, ds="c%d_%d" % (ci, p))
    if ci + 2 < 6:
        sc.chain(dma_chunk(ci + 2), base, step=3)
sc.chain(part_out(0), nr + 40 * 4 - 4, step=3)
vRd, vOutA = TMP + 6, TMP + 7
ta, tb = TMP + 8, TMP + 9
l2 = [("v_and_b32 v%d, 31, v%d" % (vP2, vL), "v"),
      ("v_lshrrev_b32 v%d, 2, v%d" % (ta, vP2), "v"),
      ("s_and_b32 s%d, s2, 0xf8" % sU1, "s"),
      ("v_or_b32 v%d, s%d, v%d" % (ta, sU1, ta), "v"),
      ("v_lshlrev_b32 v%d, 9, v%d" % (ta, ta), "v"),
      ("v_and_b32 v%d, 3, v%d" % (vP2, vL), "v"),
      ("v_lshl_add_u32 v%d, v%d, 3, v%d" % (vP2, vP2, ta), "v"),
      ("s_mul_i32 s%d, s%d, 160" % (sU2, sI), "s"),
      ("s_mul_i32 s%d, s%d, 40" % (sU3, sW), "s"),
      ("s_add_u32 s%d, s%d, s%d" % (sU2, sU2, sU3), "s"),
      ("v_add_u32 v%d, s%d, v%d" % (ta, sU2, vL), "v"),
      ("v_lshlrev_b32 v%d, 4, v%d" % (vRd, ta), "v"),
      ("v_lshrrev_b32 v%d, 6, v%d" % (tb, ta), "v"),
      ("v_mul_u32_u24 v%d, 52, v%d" % (vOutA, tb), "v"),
      ("v_lshrrev_b32 v%d, 8, v%d" % (vOutA, vOutA), "v"),
      ("v_mad_i32_i24 v%d, v%d, -5, v%d" % (tb, vOutA, tb), "v"),
      ("v_lshlrev_b32 v%d, 6, v%d" % (vOutA, vOutA), "v"),
      ("v_lshl_add_u32 v%d, v%d, 14, v%d" % (vOutA, tb, vOutA), "v"),
      ("v_and_b32 v%d, 15, v%d" % (tb, ta), "v"),
      ("v_lshl_add_u32 v%d, v%d, 10, v%d" % (vOutA, tb, vOutA), "v"),
      ("v_and_b32 v%d, 0x30, v%d" % (tb, ta), "v"),
      ("v_add_u32 v%d, v%d, v%d" % (vOutA, vOutA, tb), "v"),
      ("v_mov_b32 v%d, 0x%x" % (tb, OOB), "v"),
      ("v_cmp_gt_u32 vcc, 40, v%d" % vL, "v"),
      ("s_mul_i32 s%d, s%d, 40960" % (sU1, sU1), "s"),
      ("s_add_u32 s%d, s%d, 0x%x" % (sU1, sU1, PX_OFF), "s"),
      ("v_cndmask_b32 v%d, v%d, v%d, vcc" % (vRd, tb, vRd), "v"),
      ("v_cndmask_b32 v%d, v%d, v%d, vcc" % (vOutA, tb, vOutA), "v"),
      ("s_mul_i32 s%d, s%d, 163840" % (sU2, sB), "s"),
      ("s_lshl_b32 s%d, s%d, 8" % (sU3, sC), "s"),
      ("s_add_u32 s%d, s%d, s%d" % (sU2, sU2, sU3), "s"),
      ("s_mov_b32 s%d, 0xffff0000" % sU3, "s")]
sc.chain(l2, nr + 40 * 5)


def flagA():
    k.wait(vm="P0")
    k("buffer_store_dwordx2 %s, v%d, %s, s%d offen offset:128 sc1" % (vr(vN, 2), vF, sr(WS), sFL), "FA")


sc.put(nr + 40 * 5 + 36, flagA, "g")
if OPT.get("verbose"):
    print("outproj model cycles", sc.cost(), file=sys.stderr)
sc.emit()
stamp(7, 3)
probe(3)
run(part_out(1))
stamp(13)


def poll(name, off):
    k("s_mov_b32 s%d, 0" % sCNT)
    k.label(name)
    k("buffer_load_dwordx2 %s, v%d, %s, s%d offen offset:%d sc1" % (vr(vPD, 2), vP2, sr(WS), sU0, off))
    k("s_waitcnt vmcnt(0)")
    k("v_cmp_ne_u64 vcc, %s, %s" % (vr(vN, 2), vr(vPD, 2)))
    k("s_cbranch_vccz %s_ok" % name)
    k("s_add_u32 s%d, s%d, 1" % (sCNT, sCNT))
    k("s_cmp_lt_u32 s%d, %d" % (sCNT, SPIN))
    k("s_cbranch_scc1 %s" % name)
    k.label(name + "_ok")


RB = 64
SUM = 100
U = 110


def red_loads(qh):
    for n in range(8):
        k("s_add_u32 s%d, s%d, %d" % (sT0, sU1, n * 40960 + qh * 20480))
        k("buffer_load_dwordx4 %s, v%d, %s, s%d offen sc1" % (vr(RB + 4 * n), vRd, sr(WS), sT0), "R%d" % n)


def red_sum(qh):
    for n in range(8):
        k.wait(vm="R%d" % n)
        for d in range(4):
            src = RB + 4 * n + d
            dst = SUM if n == 0 else U
            k("v_lshlrev_b32 v%d, 16, v%d" % (dst + 2 * d, src))
            k("v_and_b32 v%d, s%d, v%d" % (dst + 2 * d + 1, sU3, src))
        if n:
            for d in range(4):
                k("v_pk_add_f32 %s, %s, %s" % (vr(SUM + 2 * d, 2), vr(SUM + 2 * d, 2), vr(U + 2 * d, 2)))
    for d in range(4):
        k("v_cvt_pk_bf16_f32 v%d, v%d, v%d" % (120 + d, SUM + 2 * d, SUM + 2 * d + 1))
    k("s_add_u32 s%d, s%d, %d" % (sT0, sU2, qh * 80 * 1024))
    k("buffer_store_dwordx4 %s, v%d, %s, s%d offen" % (vr(120), vOutA, sr(OUT), sT0), "OUT")


k("s_waitcnt vmcnt(0)")
k("buffer_store_dwordx2 %s, v%d, %s, s%d offen offset:256 sc1" % (vr(vN, 2), vF, sr(WS), sFL), "FB")
stamp(8, 3)
poll("L_pollA", 128)
stamp(9, 3)
red_loads(0)
red_sum(0)
stamp(10, 3)
poll("L_pollB", 256)
stamp(14)
stamp(11, 3)
red_loads(1)
red_sum(1)
probe(9)
if OPT["stamps"]:
    k("s_waitcnt vmcnt(0)")
    stamp(15)
    stamp(12, 3)
    k("s_waitcnt lgkmcnt(0)")
    for n in range(2 * NST):
        k("v_mov_b32 v%d, s%d" % (24 + n, STAMP0 + n))
    k("s_mul_i32 s%d, s2, %d" % (sT0, NST * 8))
    k("s_add_u32 s%d, s%d, 0x%x" % (sT0, sT0, STAMP_OFF))
    k("v_mov_b32 v%d, 0x%x" % (TMP, OOB))
    k("v_cmp_eq_u32 vcc, %d, v0" % (64 * (OPT["stamps"] - 1)))
    k("v_cndmask_b32 v%d, v%d, 0, vcc" % (TMP, TMP))
    for n in range(NST // 2):
        k("buffer_store_dwordx4 %s, v%d, %s, s%d offen offset:%d" % (vr(24 + 4 * n), TMP, sr(WS), sT0, 16 * n))
k.label("L_end")
k("s_endpgm")

k.label("L_f1_slow")
k("buffer_store_dwordx2 %s, v%d, %s, s%d offen sc1" % (vr(vN, 2), vF, sr(WS), sFL))
k("s_branch L_f1_done")

k.label("L_poll1")
k("s_mov_b32 s%d, 0" % sT2)
k.label("L_poll1_loop")
k("buffer_load_dwordx2 %s, v%d, %s, s%d offen sc1" % (vr(vPD, 2), vPoll, sr(WS), sU0))
k("s_waitcnt vmcnt(0)")
k("v_cmp_ne_u64 vcc, %s, %s" % (vr(vN, 2), vr(vPD, 2)))
k("s_cbranch_vccz L_poll1_ok")
k("s_add_u32 s%d, s%d, 1" % (sT2, sT2))
k("s_cmp_lt_u32 s%d, %d" % (sT2, SPIN))
k("s_cbranch_scc1 L_poll1_loop")
k("s_branch L_poll1_ok")

k.label("L_nonce_slow")
k("s_mov_b32 s%d, 0" % sCNT)
k("v_mov_b32 v%d, 0" % TMP)
k.label("L_nonce_spin")
k("buffer_load_dwordx2 %s, v%d, %s, 0 offen sc1" % (vr(vN, 2), TMP, sr(DBG)))
k("s_waitcnt vmcnt(0)")
k("v_readfirstlane_b32 s%d, v%d" % (sN0, vN))
k("v_readfirstlane_b32 s%d, v%d" % (sN1, vN + 1))
k("s_and_b32 s%d, s%d, 1" % (sT0, sN0))
k("s_lshr_b32 s%d, s%d, 31" % (sT1, sN1))
k("s_and_b32 s%d, s%d, s%d" % (sT0, sT0, sT1))
k("s_cbranch_scc1 L_nonce_ok")
k("s_add_u32 s%d, s%d, 1" % (sCNT, sCNT))
k("s_cmp_lt_u32 s%d, %d" % (sCNT, SPIN))
k("s_cbranch_scc1 L_nonce_spin")
k("s_branch L_nonce_ok")

if OPT["fallback"]:
    k.label("L_fallback")
    k("s_cmp_lg_u32 s%d, 0" % sPASS)
    k("s_cbranch_scc1 L_nofb")
    k("s_mov_b32 s%d, 1" % sPASS)
    k("s_waitcnt vmcnt(0) lgkmcnt(0)")
    k("s_barrier")
    k("s_nop 7")
    MX = L0
    for t in range(5):
        k("v_mov_b32 v%d, 0xff800000" % (MX + t))
    k("s_lshl_b32 s%d, s%d, 11" % (sT0, sX))
    for n in range(4):
        k("v_subrev_u32 v%d, s%d, v%d" % (L0 + 8 + n, sT0, vKr[n]))
    k("v_mov_b32 v%d, s%d" % (vN, sN0))
    k("s_mov_b32 s%d, 0" % sCNT)
    k.label("L_fb_loop")
    k("s_add_u32 m0, s%d, %d" % (sWT, KS[0]))
    k("s_nop 0")
    for n in range(4):
        k("buffer_load_dwordx4 v%d, %s, s%d offen offset:%d lds" % (vKd, sr(K_), sCNT, n * 1024))
    k("s_waitcnt vmcnt(0)")
    k("s_barrier")
    k("s_mov_b32 s%d, 0" % sT1)
    k.label("L_fb_kt")
    for n in range(4):
        k("v_add_u32 v%d, s%d, v%d" % (L0 + 12 + n, sT1, L0 + 8 + n))
    for n in range(4):
        k("ds_read_b128 %s, v%d offset:%d" % (ar(aVFO + 4 * n), L0 + 12 + n, KS[0]))
    k("s_waitcnt lgkmcnt(0)")
    for half in range(2):
        for kk in range(2):
            kq = half * 2 + kk
            for t in range(5):
                d = vr(S(1, half, t))
                k(mfma(d, ar(aVFO + 4 * kq), Qf(kq, t), "0" if kk == 0 else d))
    for t in range(5):
        for n in range(4):
            k("v_add_f32 v%d, v%d, v%d" % (S(1, 0, t) + n, S(1, 0, t) + n, S(1, 1, t) + n))
    for t in range(5):
        k("v_max3_f32 v%d, v%d, v%d, v%d" % (MX + t, MX + t, S(1, 0, t), S(1, 0, t) + 1))
        k("v_max3_f32 v%d, v%d, v%d, v%d" % (MX + t, MX + t, S(1, 0, t) + 2, S(1, 0, t) + 3))
    k("s_add_u32 s%d, s%d, 1024" % (sT1, sT1))
    k("s_cmp_lt_u32 s%d, 4096" % sT1)
    k("s_cbranch_scc1 L_fb_kt")
    k("s_barrier")
    k("s_add_u32 s%d, s%d, 16384" % (sCNT, sCNT))
    k("s_cmp_lt_u32 s%d, 131072" % sCNT)
    k("s_cbranch_scc1 L_fb_loop")
    max_to_negm(lambda t: MX + t)
    run(tiles([("K", 0, KS[0]), ("K", 1, KS[1]), ("K", 2, KS[2]), ("V", 0, VS[0]), ("V", 1, VS[1]),
               ("W", 0, VS[3]), ("V", 2, VS[2])]))
    k("s_waitcnt vmcnt(0)")
    k("s_barrier")
    for kt in range(2):
        for kq in range(4):
            emit(k, rd_k(kt, kq, KS[0], "k"))
    k("s_waitcnt lgkmcnt(0)")
    k("s_branch L_attn")
if OPT["codepf"]:
    k(".fill 2048, 4, 0xbf800000")

out = (HDR + "; @launch grid=(256,1,1) block=(256,1,1) lds=163840\n"
       + '.amdgcn_target "amdgcn-amd-amdhsa--gfx950"\n' + k.text() + kernel_desc(KN, 512, 102, 256))
open(sys.argv[1], "w").write(out)
print("instructions:", sum(1 for i in k.ins if i.real), "pads:", getattr(k, "npad", 0), file=sys.stderr)
```
